```python
import torch

def _softmax(x, axis=-1):
    return torch.softmax(x, dim=axis)
def _gelu(x):
    return torch.nn.functional.gelu(x, approximate="tanh")
def _silu(x):
    return torch.nn.functional.silu(x)
def _sigmoid(x):
    return torch.sigmoid(x)
def _layernorm(x, axis=-1, eps=1e-5):
    m = x.mean(dim=axis, keepdim=True)
    v = x.var(dim=axis, keepdim=True, unbiased=False)
    return (x - m) / torch.sqrt(v + eps)
def _scatter_add(tgt, idx, src, axis=0):
    return tgt.clone().index_add_(axis, idx, src)
def _segment_sum(src, seg, n):
    out = torch.zeros((n,) + src.shape[1:], dtype=src.dtype)
    return out.index_add_(0, seg, src)
def _pad(x, pw):
    flat = tuple(v for pair in reversed(pw) for v in pair)
    return torch.nn.functional.pad(x, flat)

kernel_name = 'recurrent_scan__sliding_block_cached__dense_activation_gelu__prompt'

def setup_inputs():

    _w = (lambda a: (lambda t: t.to(torch.bfloat16) if t.is_floating_point() else t)(torch.as_tensor(a)))
    def _A_setup():
        B, Sq, D = 1, 2048, 1024
        Hq, Hkv, Sk, Dh = 32, 4, 2048, 128
        assert Hq % Hkv == 0, (Hq, Hkv)
        return {
            "x": _w((lambda *s: torch.randn(*s, dtype=torch.bfloat16) * 0.05)(B, Sq, D)),
            "k_cache": _w((lambda *s: torch.randn(*s, dtype=torch.bfloat16) * 1.6)(B, Hkv, Sk, Dh)),
            "v_cache": _w((lambda *s: torch.randn(*s, dtype=torch.bfloat16) * 0.8)(B, Hkv, Sk, Dh)),
            "wq": _w((lambda *s: torch.randn(*s, dtype=torch.bfloat16) * 1.6)(D, Hq * Dh) * (D ** -0.5)),
            "wo": _w((lambda *s: torch.randn(*s, dtype=torch.bfloat16) * 0.8)(Hq * Dh, D) * ((Hq * Dh) ** -0.5)),
        }
    _A_in = _A_setup()

    def _B_setup():
        B, S, D, F = 1, 2048, 1024, 3584
        return {
            "x": _w((lambda *s: torch.randn(*s, dtype=torch.bfloat16) * 0.05)(B, S, D)),
            "w1": _w((lambda *s: torch.randn(*s, dtype=torch.bfloat16) * 1.6)(D, F) * (D ** -0.5)),
            "b1": _w((lambda *s: torch.randn(*s, dtype=torch.bfloat16) * 1.6)(F) * 0.01),
            "w2": _w((lambda *s: torch.randn(*s, dtype=torch.bfloat16) * 0.2)(F, D) * (F ** -0.5)),
            "b2": _w((lambda *s: torch.randn(*s, dtype=torch.bfloat16) * 0.2)(D) * 0.01),
        }
    _B_in = _B_setup()

    return {
        "A_x": _A_in["x"],
        "A_k_cache": _A_in["k_cache"],
        "A_v_cache": _A_in["v_cache"],
        "A_wq": _A_in["wq"],
        "A_wo": _A_in["wo"],
        "B_x": _B_in["x"],
        "B_w1": _B_in["w1"],
        "B_b1": _B_in["b1"],
        "B_w2": _B_in["w2"],
        "B_b2": _B_in["b2"],
    }

def reference(A_x, A_k_cache, A_v_cache, A_wq, A_wo, B_x, B_w1, B_b1, B_w2, B_b2):
    def _A_ref(x, k_cache, v_cache, wq, wo):
        B, Sq, D = x.shape
        Hq, Dh = 32, 128
        Hkv, Sk = k_cache.shape[1], k_cache.shape[2]
        W = min(4096, max(256, Sk // 4))
        rep = Hq // Hkv
        q = (lambda x, *d: x.permute(*d))((x @ wq).reshape(B, Sq, Hq, Dh), 0, 2, 1, 3)
        k = (lambda x, n, axis: torch.repeat_interleave(x, n, dim=axis))(k_cache[:, :, Sk - W:, :], rep, axis=1)
        v = (lambda x, n, axis: torch.repeat_interleave(x, n, dim=axis))(v_cache[:, :, Sk - W:, :], rep, axis=1)
        scores = torch.einsum("bhqd,bhkd->bhqk", q, k) * (Dh ** -0.5)
        p = _softmax(scores, axis=-1)
        o = torch.einsum("bhqk,bhkd->bhqd", p, v)
        return (lambda x, *d: x.permute(*d))(o, 0, 2, 1, 3).reshape(B, Sq, Hq * Dh) @ wo

    def _B_ref(x, w1, b1, w2, b2):
        h = torch.einsum("bsd,df->bsf", x, w1) + b1
        h = _gelu(h)
        return torch.einsum("bsf,fd->bsd", h, w2) + b2

    x = A_x
    xn = _layernorm(x, axis=-1)
    s = _A_ref(xn, A_k_cache, A_v_cache, A_wq, A_wo)
    g = _silu(_B_ref(xn, B_w1, B_b1, B_w2, B_b2))
    return x + s * g
```

```python
import re

class Em:
    def __init__(self):
        self.L = []
        self.vm = []
    def e(self, s):
        for line in s.split("\n"):
            line = line.strip()
            if line: self.L.append(line)
    def vmem(self, s, tag=None):
        self.L.append(s); self.vm.append(tag)
    def vm_after(self, tag):
        for i in range(len(self.vm) - 1, -1, -1):
            if self.vm[i] == tag: return len(self.vm) - 1 - i
        return None
    def wait_vm(self, tags, extra=""):
        ns = [self.vm_after(t) for t in tags]
        ns = [n for n in ns if n is not None]
        assert ns, tags
        n = min(min(ns), 63)
        self.L.append(f"s_waitcnt vmcnt({n}){extra}")
        return n
    def text(self):
        return "\n".join(("" if (l.endswith(":") or l.startswith(".") or l.startswith(";")) else "  ") + l for l in self.L) + "\n"

def v(i, n=1): return f"v{i}" if n == 1 else f"v[{i}:{i+n-1}]"
def a(i, n=1): return f"a{i}" if n == 1 else f"a[{i}:{i+n-1}]"
def s(i, n=1): return f"s{i}" if n == 1 else f"s[{i}:{i+n-1}]"

_REG = re.compile(r"^(-|abs\()?([vas])(?:(\d+)|\[(\d+):(\d+)\])\)?$")
def regs(op):
    op = op.strip()
    if op in ("vcc",): return {("s", 106), ("s", 107)}
    if op == "exec": return {("s", 126), ("s", 127)}
    if op == "m0": return {("s", 124)}
    m = _REG.match(op)
    if not m: return set()
    k = m.group(2)
    if m.group(3) is not None: return {(k, int(m.group(3)))}
    return {(k, i) for i in range(int(m.group(4)), int(m.group(5)) + 1)}

TRANS = ("v_exp_f32", "v_log_f32", "v_rcp_f32", "v_rsq_f32", "v_sqrt_f32", "v_sin_f32", "v_cos_f32")
def base(op): return re.sub(r"_e(32|64)$", "", op)
def parse(line):
    line = line.split(";")[0].strip()
    if not line or line.endswith(":") or line.startswith("."): return None
    parts = line.split(None, 1)
    op = parts[0]
    ops = []
    if len(parts) > 1:
        toks = [t.strip() for t in parts[1].split(",")]
        for t in toks:
            ops.append(t.split()[0] if t else t)
    d = dict(op=op, line=line, w=set(), r=set(), kind="other", A=set(), B=set(), C=set(), sdata=set(), states=1)
    if op == "s_nop":
        d["states"] = int(ops[0]) + 1
    elif op.startswith("v_mfma"):
        d["kind"] = "mfma"; d["w"] = regs(ops[0]); d["A"] = regs(ops[1]); d["B"] = regs(ops[2]); d["C"] = regs(ops[3])
        d["r"] = d["A"] | d["B"] | d["C"]
        d["passes"] = 8 if "32x32x16" in op else 4
    elif op.startswith("v_"):
        d["kind"] = "valu"
        if op.startswith("v_cmp"):
            d["w"] = regs(ops[0]); src = ops[1:]
            if op.startswith("v_cmpx"): d["w"] |= regs("exec")
        elif op.startswith("v_permlane") and "swap" in op:
            d["w"] = regs(ops[0]) | regs(ops[1]); src = ops
        elif op.startswith(("v_add_co", "v_sub_co", "v_addc_co", "v_subb_co")):
            d["w"] = regs(ops[0]) | regs(ops[1]); src = ops[2:]
        else:
            d["w"] = regs(ops[0]); src = ops[1:]
        for o in src: d["r"] |= regs(o)
        if op.startswith(("v_fmac", "v_dot2c", "v_pk_fmac")) or "dpp" in op or op.startswith("v_writelane"): d["r"] |= regs(ops[0])
        if op.startswith("v_cndmask") and len(ops) == 3: d["r"] |= regs("vcc")
    elif op.startswith(("buffer_load", "global_load")):
        d["kind"] = "vmem"
        if " lds" in line:
            for o in ops: d["r"] |= regs(o)
            d["r"] |= regs("m0"); d["dma"] = True
        else:
            d["w"] = regs(ops[0])
            for o in ops[1:]: d["r"] |= regs(o)
            if "d16" in op: d["r"] |= regs(ops[0])
    elif op.startswith(("buffer_store", "buffer_atomic")):
        d["kind"] = "vmem"
        for o in ops: d["r"] |= regs(o)
        if "x3" in op or "x4" in op: d["sdata"] = regs(ops[0])
        if op.startswith("buffer_atomic") and " sc0" in line: d["w"] = regs(ops[0])
    elif op.startswith(("global_store", "global_atomic")):
        d["kind"] = "vmem"
        for o in ops: d["r"] |= regs(o)
        if "x3" in op or "x4" in op: d["sdata"] = regs(ops[1])
    elif op.startswith("ds_read") or op.startswith("ds_bpermute") or op.startswith("ds_swizzle") or op.startswith("ds_permute"):
        d["kind"] = "ds"; d["w"] = regs(ops[0])
        for o in ops[1:]: d["r"] |= regs(o)
    elif op.startswith("ds_"):
        d["kind"] = "ds"
        for o in ops: d["r"] |= regs(o)
    elif op.startswith("s_"):
        d["kind"] = "salu"
        if op.startswith(("s_cmp", "s_cbranch", "s_branch", "s_waitcnt", "s_barrier", "s_endpgm", "s_setprio", "s_sleep", "s_bitcmp")):
            for o in ops: d["r"] |= regs(o)
        else:
            d["w"] = regs(ops[0]) if ops else set()
            for o in ops[1:]: d["r"] |= regs(o)
            if "saveexec" in op: d["w"] |= regs("exec")
    return d

def need(p, c):
    n = 0
    vw = {x for x in p["w"] if x[0] in "va"}
    sw = {x for x in p["w"] if x[0] == "s"}
    if p["kind"] == "valu":
        if c["kind"] == "mfma" and vw & c["r"]: n = max(n, 2)
        if c["kind"] == "mfma" and ("s", 126) in sw: n = max(n, 4)
        if base(p["op"]) in TRANS and c["kind"] == "valu" and base(c["op"]) not in TRANS and vw & c["r"]: n = max(n, 1)
        if base(p["op"]) in TRANS and c["kind"] == "valu" and vw & c["r"]: n = max(n, 1)
        if c["op"].startswith("v_permlane") and vw & c["r"]: n = max(n, 2)
        if "dpp" in c["op"] and vw & c["r"]: n = max(n, 2)
        if c["op"].startswith(("v_readfirstlane", "v_readlane")) and vw & c["r"]: n = max(n, 1)
        if sw and c["kind"] == "valu" and sw & c["r"]:
            n = max(n, 4 if c["op"].startswith(("v_readlane", "v_writelane")) else 2)
        if sw and c["kind"] == "vmem" and sw & c["r"]: n = max(n, 5)
        if ("s", 126) in sw and ("dpp" in c["op"]): n = max(n, 5)
        if ("s", 126) in sw and c["op"].startswith(("v_readfirstlane", "v_readlane", "v_writelane", "v_permlane")): n = max(n, 4)
    if p["kind"] == "salu":
        if ("s", 124) in sw and c.get("dma"): n = max(n, 1)
    if p["kind"] == "mfma":
        ps = p["passes"]
        big = {4: 8, 8: 12}[ps]; mid = {4: 6, 8: 10}[ps]; war = {4: 3, 8: 7}[ps]
        if c["kind"] == "mfma":
            if p["w"] & (c["A"] | c["B"]): n = max(n, big)
            if p["w"] & c["C"] and not (p["w"] == c["C"] and c["passes"] == ps): n = max(n, mid)
            if p["w"] & c["w"] and not (p["w"] == c["w"]): n = max(n, mid)
        elif c["kind"] in ("valu", "vmem", "ds"):
            if p["w"] & (c["r"] | c["w"]): n = max(n, big)
        if c["kind"] == "valu" and p["C"] & c["w"]: n = max(n, war)
    if p["kind"] == "vmem" and p["sdata"]:
        if p["sdata"] & c["w"]: n = max(n, 2 if c["kind"] == "valu" else 1)
    return n

def check_hazards(lines, window=14):
    ins = [d for d in (parse(l) for l in lines) if d]
    probs = []
    for i, c in enumerate(ins):
        dist = 0
        j = i - 1
        while j >= 0 and dist < window:
            p = ins[j]
            if p["op"] in ("s_endpgm", "s_branch"): break
            nd = need(p, c)
            if nd > dist:
                probs.append(f"need {nd} have {dist}: [{p['line']}] -> [{c['line']}]")
            dist += p["states"]
            j -= 1
    return probs
```

```python
import sys, struct, math
from asmlib import Em, v, a, s, check_hazards

NAME = "recurrent_scan__sliding_block_cached__dense_activation_gelu__prompt"
MB = 1 << 20
XN_OFF, KV_OFF, O_OFF, H_OFF, G_OFF = 0, 4*MB, 8*MB, 24*MB, 40*MB
WS_BYTES = 256*MB
def f32(x): return "0x%08x" % struct.unpack("<I", struct.pack("<f", x))[0]
MFMA = "v_mfma_f32_16x16x32_bf16"

class K(Em):
    def __init__(self):
        super().__init__(); self.lg = []
    def lds(self, txt, tag=None):
        self.L.append(txt); self.lg.append(tag)
    def lg_after(self, tag):
        for i in range(len(self.lg)-1, -1, -1):
            if self.lg[i] == tag: return len(self.lg)-1-i
        raise KeyError(tag)
    def srd(self, d, lo, hi, nbytes):
        self.e(f"s_mov_b32 s{d}, s{lo}\ns_and_b32 s{d+1}, s{hi}, 0xffff\ns_mov_b32 s{d+2}, {nbytes}\ns_mov_b32 s{d+3}, 0x20000")

def header(k, name):
    k.e(f".globl {name}\n.p2align 8\n.type {name},@function\n{name}:")

def descriptor(name, nv, accoff, ns=96):
    return f""".amdhsa_kernel {name}
  .amdhsa_next_free_vgpr {nv}
  .amdhsa_next_free_sgpr {ns}
  .amdhsa_accum_offset {accoff}
  .amdhsa_group_segment_fixed_size 0
  .amdhsa_kernarg_size 104
  .amdhsa_user_sgpr_count 2
  .amdhsa_user_sgpr_kernarg_segment_ptr 1
  .amdhsa_system_sgpr_workgroup_id_x 1
.end_amdhsa_kernel
"""

def reduce4(k, x, t, op):
    k.e(f"v_mov_b32 v{t}, v{x}\ns_nop 1\nv_permlane32_swap_b32 v{x}, v{t}\n{op} v{x}, v{x}, v{t}")
    k.e(f"v_mov_b32 v{t}, v{x}\ns_nop 1\nv_permlane16_swap_b32 v{x}, v{t}\n{op} v{x}, v{x}, v{t}")

def round_bf16(k, d, x):
    k.e(f"v_cvt_pk_bf16_f32 v{d}, v{x}, v{x}\nv_and_b32 v{d}, 0xffff0000, v{d}")

def gen_p1():
    k = K(); header(k, "prep_kernel")
    k.e("s_cmp_ge_u32 s2, 256\ns_cbranch_scc1 P1_end")
    k.e("s_load_dwordx4 s[4:7], s[0:1], 0")
    k.e("s_load_dwordx2 s[8:9], s[0:1], 16")
    k.e("s_load_dwordx2 s[10:11], s[0:1], 96")
    k.e("v_lshrrev_b32 v1, 6, v0\nv_and_b32 v0, 63, v0\nv_readfirstlane_b32 s3, v1")
    k.e("v_and_b32 v2, 15, v0\nv_lshrrev_b32 v3, 4, v0\nv_lshlrev_b32 v4, 4, v0")
    k.e("s_waitcnt lgkmcnt(0)")
    k.srd(12, 4, 5, 4*MB); k.srd(16, 6, 7, 2*MB); k.srd(20, 8, 9, 2*MB); k.srd(24, 10, 11, WS_BYTES)
    k.e("s_cmp_ge_u32 s2, 128\ns_cbranch_scc1 P1_kv")
    k.e("s_lshl_b32 s28, s2, 15\ns_lshl_b32 s29, s3, 8\ns_add_u32 s28, s28, s29")
    k.e("v_lshlrev_b32 v5, 11, v2\nv_lshl_add_u32 v5, v3, 4, v5")
    for i in range(4):
        k.e(f"buffer_load_dwordx4 v[{8+4*i}:{11+4*i}], v5, s[12:15], s28 offen offset:{64*i}")
    k.e("s_lshl_b32 s29, s3, 2\nv_lshlrev_b32 v6, 5, v2\nv_add_u32 v7, s29, v6")
    X = 32
    for i in range(4):
        k.e(f"s_waitcnt vmcnt({3-i})")
        for d in range(4):
            r = 8 + 4*i + d; o = X + 8*i + 2*d
            k.e(f"v_lshlrev_b32 v{o}, 16, v{r}\nv_and_b32 v{o+1}, 0xffff0000, v{r}")
    k.e(f"v_add_f32 v24, v{X}, v{X+1}\nv_add_f32 v25, v{X+2}, v{X+3}")
    for i in range(4, 32, 2):
        k.e(f"v_add_f32 v24, v24, v{X+i}\nv_add_f32 v25, v25, v{X+i+1}")
    k.e("v_add_f32 v24, v24, v25")
    reduce4(k, 24, 25, "v_add_f32")
    def xwave(off):
        k.e(f"ds_write_b32 v7, v24 offset:{off}\ns_waitcnt lgkmcnt(0)\ns_barrier")
        k.e(f"ds_read_b128 v[8:11], v6 offset:{off}\nds_read_b128 v[12:15], v6 offset:{off+16}\ns_waitcnt lgkmcnt(0)")
        k.e("v_add_f32 v8, v8, v9\nv_add_f32 v10, v10, v11\nv_add_f32 v12, v12, v13\nv_add_f32 v14, v14, v15")
        k.e("v_add_f32 v8, v8, v10\nv_add_f32 v12, v12, v14\nv_add_f32 v24, v8, v12")
        k.e(f"v_mul_f32 v24, {f32(1/1024)}, v24")
    xwave(0)
    k.e("v_mov_b32 v26, v24")
    k.e("v_mov_b32 v24, 0\nv_mov_b32 v25, 0")
    for i in range(0, 32, 2):
        k.e(f"v_sub_f32 v27, v{X+i}, v26\nv_sub_f32 v28, v{X+i+1}, v26\nv_fmac_f32 v24, v27, v27\nv_fmac_f32 v25, v28, v28")
    k.e("v_add_f32 v24, v24, v25")
    reduce4(k, 24, 25, "v_add_f32")
    xwave(512)
    round_bf16(k, 26, 26)
    round_bf16(k, 24, 24)
    k.e(f"v_add_f32 v24, {f32(1e-5)}, v24")
    round_bf16(k, 24, 24)
    k.e("v_sqrt_f32 v24, v24\ns_nop 0")
    round_bf16(k, 24, 24)
    k.e("v_rcp_f32 v24, v24\ns_nop 0")
    k.e("s_lshr_b32 s28, s2, 2\ns_lshl_b32 s28, s28, 17\ns_and_b32 s29, s2, 3\ns_lshl_b32 s29, s29, 10\ns_add_u32 s28, s28, s29")
    k.e("s_lshl_b32 s29, s3, 14\ns_add_u32 s28, s28, s29")
    for i in range(4):
        for d in range(4):
            o = X + 8*i + 2*d; r = 8 + 4*i + d
            k.e(f"v_sub_f32 v27, v{o}, v26\nv_sub_f32 v28, v{o+1}, v26\nv_cvt_pk_bf16_f32 v27, v27, v28")
            k.e(f"v_and_b32 v28, 0xffff0000, v27\nv_lshlrev_b32 v27, 16, v27\nv_mul_f32 v27, v27, v24\nv_mul_f32 v28, v28, v24")
            k.e(f"v_cvt_pk_bf16_f32 v{r}, v27, v28")
        k.e(f"buffer_store_dwordx4 v[{8+4*i}:{11+4*i}], v4, s[24:27], s28 offen")
        k.e("s_add_u32 s28, s28, 4096")
    k.e("s_endpgm")
    k.e("P1_kv:")
    k.e("s_sub_u32 s28, s2, 128")
    k.e("s_lshr_b32 s29, s28, 5\ns_and_b32 s30, s28, 31")
    k.e("s_lshl_b32 s31, s28, 13\ns_lshl_b32 s32, s3, 10\ns_add_u32 s31, s31, s32")
    k.e(f"s_add_u32 s31, s31, {KV_OFF}")
    k.e(f"s_lshl_b32 s29, s29, 19\ns_add_u32 s29, s29, {1536*256}")
    k.e("s_cmp_eq_u32 s30, 31\ns_cbranch_scc1 P1_v15")
    k.e("s_cmp_eq_u32 s30, 0\ns_cbranch_scc1 P1_k")
    k.e("s_bitcmp1_b32 s30, 0\ns_cbranch_scc0 P1_v")
    k.e("P1_k:")
    k.e("s_add_u32 s33, s30, 1\ns_lshr_b32 s33, s33, 1")
    k.e("s_lshl_b32 s33, s33, 13\ns_add_u32 s29, s29, s33")
    k.e("s_lshr_b32 s33, s3, 2\ns_lshl_b32 s33, s33, 12\ns_add_u32 s29, s29, s33")
    k.e("s_and_b32 s33, s3, 3\ns_lshl_b32 s33, s33, 6\ns_add_u32 s29, s29, s33")
    k.e("v_lshlrev_b32 v5, 8, v2\nv_lshl_add_u32 v5, v3, 3, v5")
    k.e("buffer_load_dwordx2 v[8:9], v5, s[16:19], s29 offen\nbuffer_load_dwordx2 v[10:11], v5, s[16:19], s29 offen offset:32")
    k.e("s_waitcnt vmcnt(0)\nbuffer_store_dwordx4 v[8:11], v4, s[24:27], s31 offen\ns_endpgm")
    k.e("P1_v15:\ns_mov_b32 s30, 32")
    k.e("P1_v:")
    k.e("s_lshr_b32 s33, s30, 1\ns_sub_u32 s33, s33, 1")
    k.e("s_lshl_b32 s33, s33, 13\ns_add_u32 s29, s29, s33")
    k.e("s_lshl_b32 s33, s3, 5\ns_add_u32 s29, s29, s33\ns_add_u32 s34, s29, 4096")
    k.e("v_lshlrev_b32 v5, 10, v3\nv_lshl_add_u32 v5, v2, 1, v5")
    for e in range(8):
        k.e(f"buffer_load_ushort v{12+e}, v5, s[20:23], s{29 if e < 4 else 34} offen offset:{(e%4)*256}")
    k.e("s_waitcnt vmcnt(0)")
    for d in range(4):
        k.e(f"v_lshl_or_b32 v{8+d}, v{13+2*d}, 16, v{12+2*d}")
    k.e("buffer_store_dwordx4 v[8:11], v4, s[24:27], s31 offen")
    k.e("P1_end:\ns_endpgm")
    return k, descriptor("prep_kernel", 64, 64, 48)

LOOK = 7
class Stream:
    def __init__(self, k, frags, aring):
        self.k = k; self.frags = frags; self.aring = aring
        self.nread = 0
        self.q = {"x": [], "d": []}
        self.carry = []
        self.valu = []
    def areg(self, f): return self.aring + (f % 8)*4
    def reads(self, f):
        return self.frags[f]["reads"](self.areg(f))
    def prime(self, n):
        for f in range(n):
            for r in self.reads(f): self.k.lds(r, ("f", f))
        self.nread = n
    def flush_valu(self, marker=None):
        while self.valu:
            if marker is not None and not any(m == marker for _, _, m in self.valu): break
            c, t, m = self.valu.pop(0); self.k.e(t)
    def flush_side(self):
        for t in self.carry: self.k.e(t)
        self.carry = []
        for q in self.q.values():
            emit_now(self.k, q); del q[:]
    def group(self, f, mf, pre=None, next_waits=1, vq=None, gv=2):
        k = self.k
        rd = []
        if f is not None and self.nread < len(self.frags):
            nf = self.nread
            assert nf == f + LOOK, (nf, f)
            if self.frags[nf].get("first"):
                st = self.frags[nf]["stage"]
                assert not any(it[2] == ("dma", st) for it in self.q["d"])
                k.wait_vm([("dma", st)]); k.e("s_barrier")
                if self.frags[nf].get("after_bar"): self.frags[nf]["after_bar"]()
            rd = self.reads(nf); self.nread += 1
        if pre: pre()
        if f is not None:
            k.e(f"s_waitcnt lgkmcnt({min(k.lg_after(('f', f)), 15)})")
        item = self.q[vq].pop(0) if vq and self.q[vq] else None
        ms = mf(self.areg(f) if f is not None else None)
        for i, m in enumerate(ms):
            k.e(m)
            cap = 2
            if i == len(ms) - 1: cap -= next_waits
            if rd:
                k.lds(rd.pop(0), ("f", self.nread - 1)); cap -= 1
            if item and i == 0 and item[0]:
                k.e(item[0]); cap -= 1
            if item and i == gv:
                for t in self.carry: k.e(t); cap -= 1
                self.carry = []
                k.vmem(item[1], item[2]); cap -= 1
                if item[3]: self.carry.append(item[3])
            while cap > 0:
                if self.carry and not (cap == 2 and self.valu and self.valu[0][0] == 2):
                    k.e(self.carry.pop(0)); cap -= 1
                elif self.valu and self.valu[0][0] <= cap:
                    c, t, mk = self.valu.pop(0); k.e(t); cap -= c
                else: break

def emit_now(k, items):
    for pre, txt, tag, post in items:
        if pre: k.e(pre); k.e("s_nop 0")
        k.vmem(txt, tag)
        if post: k.e(post)

def gen_p2():
    k = K(); header(k, "p2_kernel")
    QACC, XR, AR, LACC = 0, 128, 192, 128
    FACC, QF, SB, NEGM, ONES = 128, 64, 128, 192, 208
    k.e("s_cmp_ge_u32 s2, 256\ns_cbranch_scc1 P2_end")
    k.e("s_load_dwordx2 s[24:25], s[0:1], 24")
    k.e("s_load_dwordx4 s[28:31], s[0:1], 48")
    k.e("s_load_dwordx2 s[26:27], s[0:1], 96")
    k.e("v_lshrrev_b32 v1, 6, v0\nv_and_b32 v0, 63, v0\nv_readfirstlane_b32 s22, v1")
    k.e("s_and_b32 s34, s2, 7\ns_lshr_b32 s35, s2, 3")
    k.e("s_and_b32 s20, s34, 1\ns_lshl_b32 s20, s20, 2\ns_and_b32 s36, s35, 3\ns_add_u32 s20, s20, s36")
    k.e("s_lshr_b32 s21, s34, 1\ns_lshl_b32 s21, s21, 3\ns_lshr_b32 s36, s35, 2\ns_add_u32 s21, s21, s36")
    k.e("s_lshl_b32 s37, s20, 2\ns_add_u32 s37, s37, s22")
    k.e("s_and_b32 s38, s21, 1")
    k.e("s_lshl_b32 s23, s22, 12\ns_lshl_b32 s39, s22, 13")
    k.e(f"v_lshlrev_b32 v11, 4, v0\ns_lshl_b32 s36, s37, 17\nv_add_u32 v10, s36, v11\nv_add_u32 v12, 0x10000, v11")
    k.e("v_lshrrev_b32 v32, 4, v0\nv_and_b32 v33, 15, v0")
    k.e("s_lshl_b32 s36, s22, 4\nv_add_u32 v34, s36, v32")
    k.e("s_lshl_b32 s40, s21, 8\ns_mul_i32 s41, s21, 224")
    k.e("s_movk_i32 s42, 7168")
    for h in range(2):
        k.e(f"v_or_b32 v35, {4*h}, v32\nv_lshlrev_b32 v35, 1, v35\nv_xor_b32 v35, v33, v35")
        k.e("v_lshlrev_b32 v36, 4, v35\nv_lshl_add_u32 v36, v34, 13, v36\nv_add_u32 v36, s40, v36")
        for i in (2*h, 2*h+1):
            k.e(f"v_add_u32 v{1+i}, {i*(4*8192-1024)}, v36")
        k.e("v_lshrrev_b32 v37, 1, v35\nv_add_u32 v38, s38, v37")
        k.e("v_cmp_ne_u32 vcc, 7, v38\ns_nop 1\nv_cndmask_b32 v38, 0, v38, vcc")
        k.e("v_and_b32 v39, 1, v35\nv_lshlrev_b32 v39, 4, v39\nv_lshl_add_u32 v38, v38, 5, v39")
        k.e("v_mul_lo_u32 v39, v34, s42\nv_add3_u32 v38, v38, v39, s41")
        k.e("v_mov_b32 v39, 0x40000000\nv_cmp_ne_u32 vcc, 7, v37\ns_nop 1\nv_cndmask_b32 v38, v39, v38, vcc")
        for i in (2*h, 2*h+1):
            k.e(f"v_add_u32 v{5+i}, {i*(4*7168-1024)}, v38")
    k.e("s_waitcnt lgkmcnt(0)")
    k.srd(4, 24, 25, 1024*8192); k.srd(8, 28, 29, 1024*7168); k.srd(12, 26, 27, WS_BYTES); k.srd(16, 30, 31, 7168)
    k.e("s_mov_b32 s30, 0\ns_mov_b32 s31, 0\ns_mov_b32 s32, 0\ns_mov_b32 s33, 0")

    def dma_items(st):
        it = []
        slot = (st % 4)*32768
        if st < 16:
            for m in range(2):
                for i in range(4):
                    it.append((f"s_add_u32 m0, s23, {slot + m*16384}" if i == 0 else None,
                               f"buffer_load_dwordx4 v{1+4*m+i}, s[{4+4*m}:{7+4*m}], s{30+m} offen offset:{i*1024} lds", ("dma", st),
                               f"s_add_u32 s{30+m}, s{30+m}, {64*(8192 if m == 0 else 7168)}" if i == 3 else None))
        elif st < 24:
            for m in range(2):
                for i in range(4):
                    it.append((f"s_add_u32 m0, s39, {slot + m*4096}" if i == 0 else None,
                               f"buffer_load_dwordx4 v9, s[12:15], s33 offen offset:{i*1024} lds", ("dma", st),
                               f"s_add_u32 s33, s33, {4096 if m == 0 else 32768-4096}" if i == 3 else None))
        return it
    def x_items(kap):
        if kap >= 32: return []
        return [(None, f"buffer_load_dwordx4 {a(XR + (kap%4)*16 + tt*4, 4)}, v10, s[12:15], s32 offen offset:{tt*1024}", ("x", kap),
                 "s_add_u32 s32, s32, 4096" if tt == 3 else None) for tt in range(4)]
    for it in (dma_items(0), x_items(0), x_items(1), dma_items(1), x_items(2)): emit_now(k, it)
    k.e("v_lshrrev_b32 v46, 4, v0\nv_lshlrev_b32 v46, 3, v46\nv_add_u32 v46, s41, v46")
    k.e("s_lshl_b32 s36, s38, 5\ns_xor_b32 s43, s38, 1\ns_mul_i32 s43, s43, 192")
    for i in range(6): k.vmem(f"buffer_load_dwordx2 v[{32+2*i}:{33+2*i}], v46, s[16:19], s36 offen offset:{32*i}", "bias")
    k.vmem("buffer_load_dwordx2 v[44:45], v46, s[16:19], s43 offen", "bias")
    emit_now(k, dma_items(2))
    k.e(f"s_lshr_b32 s36, s21, 3\ns_lshl_b32 s36, s36, 18\ns_add_u32 s36, s36, s39\ns_add_u32 s36, s36, {KV_OFF}\nv_add_u32 v9, s36, v11")
    k.e("v_lshrrev_b32 v47, 4, v0\nv_bfe_u32 v48, v0, 2, 2")
    k.e("v_lshl_add_u32 v49, v47, 3, v48\nv_lshlrev_b32 v49, 8, v49")
    k.e("v_and_b32 v50, 3, v0\nv_lshl_add_u32 v49, v50, 3, v49")
    k.e("v_and_b32 v50, 1, v47\nv_lshl_or_b32 v50, v50, 2, v48")
    for t in range(8):
        k.e(f"v_xor_b32 v51, {t}, v50\nv_lshl_add_u32 v{16+t}, v51, 5, v49\nv_add_u32 v{24+t}, 0x10000, v{16+t}")
    for i in range(128): k.e(f"v_accvgpr_write_b32 a{QACC+i}, 0")
    k.wait_vm(["bias"])
    for ft in range(7):
        b = FACC + ft*16
        k.e(f"v_lshlrev_b32 v{b}, 16, v{32+2*ft}\nv_and_b32 v{b+1}, 0xffff0000, v{32+2*ft}")
        k.e(f"v_lshlrev_b32 v{b+2}, 16, v{33+2*ft}\nv_and_b32 v{b+3}, 0xffff0000, v{33+2*ft}")
        for tt in range(1, 4):
            for r in range(4): k.e(f"v_mov_b32 v{b+4*tt+r}, v{b+r}")

    frags = []
    S = None
    def after_bar(st):
        return lambda: S.q['d'].extend(dma_items(st + 2))
    for st in range(16):
        for ks in range(2):
            for ft in range(15):
                m, t = divmod(ft, 8)
                win = 24 if (st % 4) >= 2 else 16
                off = (st % 2)*32768 + m*16384 + ks*8192
                frags.append(dict(stage=st, first=(ks == 0 and ft == 0 and st > 0), after_bar=after_bar(st),
                    reads=lambda r, win=win, t=t, off=off: [f"ds_read_b64_tr_b16 {a(r,2)}, v{win+t} offset:{off}", f"ds_read_b64_tr_b16 {a(r+2,2)}, v{win+t} offset:{off+1024}"]))
    NG1 = len(frags)
    for st in range(16, 24):
        for n in range(32):
            off = (st % 2)*32768 + n*1024
            win = 12 if (st % 4) >= 2 else 11
            frags.append(dict(stage=st, first=(n == 0), after_bar=after_bar(st),
                reads=lambda r, win=win, off=off: [f"ds_read_b128 {a(r,4)}, v{win} offset:{off}"]))
    S = Stream(k, frags, AR)
    k.wait_vm([("dma", 0)]); k.e("s_barrier")
    S.prime(LOOK)
    f = 0
    for kap in range(32):
        S.q['x'].extend(x_items(kap + 3))
        for ft in range(15):
            def mf(ar, ft=ft, kap=kap):
                out = []
                for tt in range(4):
                    acc = a(QACC + (ft*4+tt)*4, 4) if ft < 8 else v(FACC + ((ft-8)*4+tt)*4, 4)
                    out.append(f"{MFMA} {acc}, {a(ar,4)}, {a(XR + (kap%4)*16 + tt*4, 4)}, {acc}")
                return out
            pre = (lambda kap=kap: k.wait_vm([("x", kap)])) if ft == 0 else None
            S.group(f, mf, pre, next_waits=2 if ft == 14 else 1, vq={1: 'x', 3: 'd'}.get(ft % 4) if ft < 14 else 'd')
            f += 1
    S.flush_side()
    qs = (128 ** -0.5) * math.log2(math.e)
    k.e(f"s_mov_b32 s44, {f32(qs)}\ns_mov_b32 s45, {f32(qs)}")
    T = 32
    for qt in range(4):
        for ks in range(4):
            for b in range(2):
                src = QACC + ((2*ks+b)*4 + qt)*4
                for r in range(4): k.e(f"v_accvgpr_read_b32 v{T+4*b+r}, a{src+r}")
            for p in range(4): k.e(f"v_pk_mul_f32 {v(T+2*p,2)}, {v(T+2*p,2)}, s[44:45]")
            for p in range(4): k.e(f"v_cvt_pk_bf16_f32 v{QF+(qt*4+ks)*4+p}, v{T+2*p}, v{T+2*p+1}")
    kk = 2*math.sqrt(2/math.pi)*math.log2(math.e)
    k.e(f"s_mov_b32 s46, {f32(-0.044715*kk)}\ns_mov_b32 s47, {f32(-0.044715*kk)}")
    k.e(f"v_mov_b32 v48, {f32(-kk)}\nv_mov_b32 v49, {f32(-kk)}")
    k.e("s_mov_b32 s48, 1.0\ns_mov_b32 s49, 1.0")
    k.e(f"s_mul_i32 s36, s37, 458752\ns_lshr_b32 s40, s21, 1\ns_mul_i32 s40, s40, {7*4096}\ns_add_u32 s36, s36, s40\ns_add_u32 s36, s36, {H_OFF}")
    k.e(f"s_add_u32 s41, s36, {3*4096}\ns_lshl_b32 s40, s38, 3\ns_add_u32 s41, s41, s40")
    k.e("s_lshl_b32 s40, s38, 14\ns_add_u32 s36, s36, s40")
    def gelu4(x, dst):
        t = 32
        for p in range(2): k.e(f"v_pk_mul_f32 {v(t+2*p,2)}, {v(x+2*p,2)}, {v(x+2*p,2)}")
        for p in range(2): k.e(f"v_pk_fma_f32 {v(t+2*p,2)}, {v(t+2*p,2)}, s[46:47], v[48:49]")
        for p in range(2): k.e(f"v_pk_mul_f32 {v(t+2*p,2)}, {v(t+2*p,2)}, {v(x+2*p,2)}")
        for r in range(4): k.e(f"v_exp_f32 v{t+r}, v{t+r}")
        for p in range(2): k.e(f"v_pk_add_f32 {v(t+2*p,2)}, {v(t+2*p,2)}, s[48:49]")
        for r in range(4): k.e(f"v_rcp_f32 v{t+r}, v{t+r}")
        for p in range(2): k.e(f"v_pk_mul_f32 {v(t+2*p,2)}, {v(t+2*p,2)}, {v(x+2*p,2)}")
        for p in range(2): k.e(f"v_cvt_pk_bf16_f32 v{dst+p}, v{t+2*p}, v{t+2*p+1}")
    n = 0
    for m in range(3):
        for tt in range(4):
            d = 240 + (n % 4)*4; n += 1
            gelu4(FACC + ((2*m)*4+tt)*4, d); gelu4(FACC + ((2*m+1)*4+tt)*4, d+2)
            k.vmem(f"buffer_store_dwordx4 {v(d,4)}, v11, s[12:15], s36 offen offset:{tt*1024}", "hst")
        k.e("s_add_u32 s36, s36, 4096")
    for tt in range(4):
        d = 240 + (n % 4)*4; n += 1
        gelu4(FACC + (6*4+tt)*4, d)
        k.vmem(f"buffer_store_dwordx2 {v(d,2)}, v11, s[12:15], s41 offen offset:{tt*1024}", "hst")
    k.e("P2_attn_init:")
    for r in range(4): k.e(f"v_mov_b32 v{ONES+r}, 0x3f803f80")
    def sreg(u, qt, kt): return SB + (u % 2)*32 + qt*8 + kt*4
    def qk_groups(u):
        nonlocal f
        for kt in range(2):
            for ks in range(4):
                def mf(ar, kt=kt, ks=ks):
                    out = []
                    for qt in range(4):
                        d = v(sreg(u, qt, kt), 4)
                        c = d if ks > 0 else ("0" if u < 2 else v(NEGM + qt*4, 4))
                        out.append(f"{MFMA} {d}, {a(ar,4)}, {v(QF+(qt*4+ks)*4,4)}, {c}")
                    return out
                S.group(f, mf, vq='d' if f % 4 == 1 else None, gv=3); f += 1
    def soft_tasks(u):
        tk = []
        if u == 0:
            tk.append((1, "s_nop 7", u))
            for qt in range(4):
                b = sreg(0, qt, 0); m = NEGM + qt*4
                tk += [(1, f"v_max3_f32 v{m}, v{b}, v{b+1}, v{b+2}", u), (1, f"v_max3_f32 v{m}, v{m}, v{b+3}, v{b+4}", u),
                       (1, f"v_max3_f32 v{m}, v{m}, v{b+5}, v{b+6}", u), (1, f"v_max_f32 v{m}, v{m}, v{b+7}", u)]
            for sw in ("32", "16"):
                for qt in range(4): tk.append((1, f"v_mov_b32 v{NEGM+qt*4+1}, v{NEGM+qt*4}", u))
                tk.append((1, "s_nop 1", u))
                for qt in range(4): tk.append((1, f"v_permlane{sw}_swap_b32 v{NEGM+qt*4}, v{NEGM+qt*4+1}", u))
                for qt in range(4): tk.append((1, f"v_max_f32 v{NEGM+qt*4}, v{NEGM+qt*4}, v{NEGM+qt*4+1}", u))
            for qt in range(4):
                tk.append((1, f"v_sub_f32 v{NEGM+qt*4}, 0, v{NEGM+qt*4}", u))
                for r in range(1, 4): tk.append((1, f"v_mov_b32 v{NEGM+qt*4+r}, v{NEGM+qt*4}", u))
        for qt in range(4):
            b = sreg(u, qt, 0)
            if u < 2:
                for r in range(8): tk.append((1, f"v_add_f32 v{b+r}, v{b+r}, v{NEGM+qt*4}", u))
            order = []
            for p in range(4):
                order += [(2, f"v_exp_f32 v{b+2*p}, v{b+2*p}", u), (2, f"v_exp_f32 v{b+2*p+1}, v{b+2*p+1}", u)]
                if p > 0: order.append((1, f"v_cvt_pk_bf16_f32 v{b+p-1}, v{b+2*p-2}, v{b+2*p-1}", u))
            tk += order
            tk.append(("late", f"v_cvt_pk_bf16_f32 v{b+3}, v{b+6}, v{b+7}", u))
        out = []; pend = None; cnt = 0
        for t in tk:
            if t[0] == "late":
                pend = (1, t[1], t[2]); cnt = 0; continue
            out.append(t)
            if pend is not None:
                cnt += 1
                if cnt == 2: out.append(pend); pend = None
        if pend is not None: out += [(1, "s_nop 0", u), pend]
        return out
    def pv_groups(u):
        nonlocal f
        S.flush_valu(u)
        k.e("s_nop 1")
        first = u == 0
        for dt in range(8):
            def mf(ar, dt=dt):
                out = []
                for qt in range(4):
                    d = a(QACC + (dt*4+qt)*4, 4)
                    out.append(f"{MFMA} {d}, {a(ar,4)}, {v(sreg(u, qt, 0),4)}, {'0' if first else d}")
                return out
            S.group(f, mf, next_waits=0 if dt == 7 else 1, vq='d' if f % 4 == 1 else None, gv=3); f += 1
        def mfs(_):
            return [f"{MFMA} {a(LACC+qt*4,4)}, {v(ONES,4)}, {v(sreg(u, qt, 0),4)}, {'0' if first else a(LACC+qt*4,4)}" for qt in range(4)]
        S.group(None, mfs)
    qk_groups(0)
    S.valu.extend(soft_tasks(0))
    for u in range(16):
        if u + 1 < 16:
            qk_groups(u + 1)
            if u + 1 < 16:
                pend = soft_tasks(u + 1)
        S.flush_valu(u)
        if u + 1 < 16:
            S.valu.extend(pend)
        pv_groups(u)
    assert f == len(frags)
    S.flush_side()
    k.e("s_mov_b32 s50, 0")
    k.e("P2_norm:")
    k.e("s_nop 7")
    for qt in range(4): k.e(f"v_accvgpr_read_b32 v{40+qt}, a{LACC+qt*4}")
    k.e(f"v_max3_f32 v44, v40, v41, v42\nv_max_f32 v44, v44, v43\nv_add_f32 v45, v40, v41\nv_add_f32 v46, v42, v43\nv_add_f32 v45, v45, v46")
    k.e(f"s_mov_b32 s51, {f32(2.0**30)}")
    k.e("v_cmp_nge_f32 vcc, s51, v45")
    k.e("s_cmp_lg_u32 s50, 0\ns_cbranch_scc1 P2_store")
    k.e("s_nop 0\ns_cbranch_vccnz P2_slow")
    k.e("P2_store:")
    for qt in range(4):
        k.e(f"v_rcp_f32 v{48+2*qt}, v{40+qt}")
    k.e("s_nop 0")
    for qt in range(4): k.e(f"v_mov_b32 v{49+2*qt}, v{48+2*qt}")
    k.e(f"s_lshl_b32 s36, s37, 19\ns_lshl_b32 s40, s21, 14\ns_add_u32 s36, s36, s40\ns_add_u32 s36, s36, {O_OFF}")
    n = 0
    for m in range(4):
        for qt in range(4):
            d = 240 + (n % 4)*4; n += 1
            for b in range(2):
                src = QACC + ((2*m+b)*4+qt)*4
                for r in range(4): k.e(f"v_accvgpr_read_b32 v{T+4*b+r}, a{src+r}")
            for p in range(4): k.e(f"v_pk_mul_f32 {v(T+2*p,2)}, {v(T+2*p,2)}, {v(48+2*qt,2)}")
            for p in range(4): k.e(f"v_cvt_pk_bf16_f32 v{d+p}, v{T+2*p}, v{T+2*p+1}")
            k.vmem(f"buffer_store_dwordx4 {v(d,4)}, v11, s[12:15], s36 offen offset:{qt*1024}", "ost")
        k.e("s_add_u32 s36, s36, 4096")
    k.e("P2_end:\ns_endpgm")
    k.e("P2_slow:")
    k.e("s_mov_b32 s50, 1")
    k.e(f"s_lshr_b32 s52, s21, 3\ns_lshl_b32 s52, s52, 18\ns_add_u32 s52, s52, {KV_OFF}")
    def kblock_off():
        k.e("s_lshl_b32 s54, s53, 1\ns_max_u32 s54, s54, 1\ns_sub_u32 s54, s54, 1\ns_lshl_b32 s54, s54, 13\ns_add_u32 s54, s54, s52\ns_add_u32 s55, s54, 4096")
    def load8():
        for n in range(8): k.e(f"buffer_load_dwordx4 {a(AR+n*4,4)}, v11, s[12:15], s{54 + n//4} offen offset:{(n%4)*1024}")
        k.e("s_waitcnt vmcnt(0)")
    def qk(cneg):
        for kt in range(2):
            for ks in range(4):
                for qt in range(4):
                    d = v(sreg(0, qt, kt), 4)
                    c = d if ks > 0 else (v(NEGM+qt*4, 4) if cneg else "0")
                    k.e(f"{MFMA} {d}, {a(AR+(kt*4+ks)*4,4)}, {v(QF+(qt*4+ks)*4,4)}, {c}")
        k.e("s_nop 7")
    for qt in range(4): k.e(f"v_mov_b32 v{NEGM+qt*4}, 0xff800000")
    k.e("s_mov_b32 s53, 0\nP2_slow1:")
    kblock_off(); load8(); qk(False)
    for qt in range(4):
        b = sreg(0, qt, 0); m = NEGM + qt*4
        for p in range(4): k.e(f"v_max3_f32 v{m}, v{m}, v{b+2*p}, v{b+2*p+1}")
    k.e("s_add_u32 s53, s53, 1\ns_cmp_lt_u32 s53, 16\ns_cbranch_scc1 P2_slow1")
    for qt in range(4):
        reduce4(k, NEGM+qt*4, NEGM+qt*4+1, "v_max_f32")
        k.e(f"v_sub_f32 v{NEGM+qt*4}, 0, v{NEGM+qt*4}")
        for r in range(1, 4): k.e(f"v_mov_b32 v{NEGM+qt*4+r}, v{NEGM+qt*4}")
    for i in range(128): k.e(f"v_accvgpr_write_b32 a{QACC+i}, 0")
    for i in range(16): k.e(f"v_accvgpr_write_b32 a{LACC+i}, 0")
    k.e("s_mov_b32 s53, 0\nP2_slow2:")
    kblock_off(); load8(); qk(True)
    for qt in range(4):
        b = sreg(0, qt, 0)
        for r in range(8): k.e(f"v_exp_f32 v{b+r}, v{b+r}")
        k.e("s_nop 0")
        for p in range(4): k.e(f"v_cvt_pk_bf16_f32 v{b+p}, v{b+2*p}, v{b+2*p+1}")
    k.e("s_lshl_b32 s54, s53, 1\ns_add_u32 s54, s54, 2\ns_min_u32 s54, s54, 31\ns_lshl_b32 s54, s54, 13\ns_add_u32 s54, s54, s52\ns_add_u32 s55, s54, 4096")
    load8()
    for dt in range(8):
        for qt in range(4):
            d = a(QACC + (dt*4+qt)*4, 4)
            k.e(f"{MFMA} {d}, {a(AR+dt*4,4)}, {v(sreg(0, qt, 0),4)}, {d}")
    for qt in range(4): k.e(f"{MFMA} {a(LACC+qt*4,4)}, {v(ONES,4)}, {v(sreg(0, qt, 0),4)}, {a(LACC+qt*4,4)}")
    k.e("s_nop 7")
    k.e("s_add_u32 s53, s53, 1\ns_cmp_lt_u32 s53, 16\ns_cbranch_scc1 P2_slow2")
    k.e("s_branch P2_norm")
    return k, descriptor("p2_kernel", 512, 256, 64)

def gen_p3():
    k = K(); header(k, "p3_kernel")
    ACC, XR, AR = 0, 128, 64
    k.e("s_cmp_ge_u32 s2, 256\ns_cbranch_scc1 P3_end")
    k.e("s_load_dwordx2 s[24:25], s[0:1], 32")
    k.e("s_load_dwordx4 s[28:31], s[0:1], 64")
    k.e("s_load_dwordx4 s[44:47], s[0:1], 80")
    k.e("s_load_dwordx2 s[26:27], s[0:1], 96")
    k.e("s_load_dwordx2 s[48:49], s[0:1], 0")
    k.e("v_lshrrev_b32 v1, 6, v0\nv_and_b32 v0, 63, v0\nv_readfirstlane_b32 s22, v1")
    k.e("s_and_b32 s34, s2, 7\ns_lshr_b32 s35, s2, 3")
    k.e("s_and_b32 s38, s34, 1")
    k.e("s_bfe_u32 s20, s34, 0x10001\ns_lshl_b32 s20, s20, 3\ns_and_b32 s36, s35, 7\ns_add_u32 s20, s20, s36")
    k.e("s_lshr_b32 s21, s34, 2\ns_lshl_b32 s21, s21, 2\ns_lshr_b32 s36, s35, 3\ns_add_u32 s21, s21, s36")
    k.e("s_lshr_b32 s40, s22, 1\ns_and_b32 s41, s22, 1")
    k.e("s_lshl_b32 s37, s20, 1\ns_add_u32 s37, s37, s41")
    k.e("s_lshl_b32 s23, s22, 13")
    k.e("v_lshlrev_b32 v11, 4, v0")
    k.e(f"s_cmp_eq_u32 s38, 0\ns_mov_b32 s36, 458752\ns_cselect_b32 s36, 524288, s36\ns_mov_b32 s42, {H_OFF}\ns_cselect_b32 s42, {O_OFF}, s42")
    k.e("s_cselect_b32 s39, 7, 6")
    k.e("s_mul_i32 s36, s36, s37\ns_add_u32 s36, s36, s42\ns_lshl_b32 s42, s40, 13\ns_add_u32 s36, s36, s42\nv_add_u32 v10, s36, v11")
    k.e("v_lshrrev_b32 v32, 4, v0\nv_and_b32 v33, 15, v0")
    k.e("s_lshl_b32 s36, s22, 5\nv_add_u32 v34, s36, v32\ns_lshl_b32 s42, s21, 8")
    for h in range(2):
        k.e(f"v_or_b32 v35, {4*h}, v32\nv_lshlrev_b32 v35, 1, v35\nv_xor_b32 v35, v33, v35")
        k.e("v_lshlrev_b32 v36, 4, v35\nv_lshl_add_u32 v36, v34, 11, v36\nv_add_u32 v36, s42, v36")
        for i in range(h, 8, 2):
            k.e(f"v_add_u32 v{1+i}, {i*4*2048 - (i%4)*1024}, v36")
    k.e("s_waitcnt lgkmcnt(0)")
    k.e("s_cmp_eq_u32 s38, 0\ns_cselect_b32 s24, s24, s28\ns_cselect_b32 s25, s25, s29")
    k.e(f"s_mov_b32 s4, s24\ns_and_b32 s5, s25, 0xffff\ns_mov_b32 s6, {3584*2048}\ns_cmp_eq_u32 s38, 0\ns_cselect_b32 s6, {4096*2048}, s6\ns_mov_b32 s7, 0x20000")
    k.srd(12, 26, 27, WS_BYTES); k.srd(16, 30, 31, 2048); k.srd(8, 48, 49, 4*MB); k.srd(52, 44, 45, 4*MB); k.srd(56, 46, 47, 256)
    k.e("s_mov_b32 s30, 0\ns_mov_b32 s32, 0")
    NST = 16
    def dma_items(st):
        if st >= NST: return []
        return [(f"s_add_u32 m0, s23, {(st%4)*32768 + (i//4)*4096}" if i % 4 == 0 else None,
                 f"buffer_load_dwordx4 v{1+i}, s[4:7], s30 offen offset:{(i%4)*1024} lds", ("dma", st),
                 f"s_add_u32 s30, s30, {128*2048}" if i == 7 else None) for i in range(8)]
    def x_items(kap):
        if kap >= 2*NST: return []
        return [(None, f"buffer_load_dwordx4 {a(XR + (kap%8)*16 + tt*4, 4)}, v10, s[12:15], s32 offen offset:{tt*1024}", ("x", kap),
                 f"s_add_u32 s32, s32, {4096 if kap % 2 == 0 else 12288}" if tt == 3 else None) for tt in range(4)]
    XD = 5
    for it in (dma_items(0), x_items(0), x_items(1), dma_items(1), x_items(2), x_items(3), dma_items(2)[:4], x_items(4)): emit_now(k, it)
    k.e("v_lshrrev_b32 v47, 2, v0\nv_and_b32 v50, 7, v47\nv_lshlrev_b32 v49, 8, v47\nv_and_b32 v48, 3, v0\nv_lshl_add_u32 v49, v48, 3, v49")
    k.e("s_lshl_b32 s36, s40, 14\nv_add_u32 v49, s36, v49")
    for t in range(8):
        k.e(f"v_xor_b32 v51, {t}, v50\nv_lshl_add_u32 v{16+t}, v51, 5, v49\nv_add_u32 v{24+t}, 0x10000, v{16+t}")
    for i in range(128): k.e(f"v_accvgpr_write_b32 a{ACC+i}, 0")
    frags = []
    S = None
    def after_bar(st): return lambda: S.q['d'].extend(dma_items(st + 2))
    for st in range(NST):
        for ks in range(2):
            for ft in range(8):
                win = 24 if (st % 4) >= 2 else 16
                off = (st % 2)*32768 + ks*8192
                frags.append(dict(stage=st, first=(ks == 0 and ft == 0 and st > 0), after_bar=after_bar(st),
                    reads=lambda r, win=win, ft=ft, off=off: [f"ds_read_b64_tr_b16 {v(r,2)}, v{win+ft} offset:{off}", f"ds_read_b64_tr_b16 {v(r+2,2)}, v{win+ft} offset:{off+4096}"]))
    S = Stream(k, frags, AR)
    k.wait_vm([("dma", 0)]); k.e("s_barrier")
    S.prime(LOOK)
    S.q['d'].extend(dma_items(2)[4:])
    marks = []
    f = 0
    for kap in range(2*NST):
        if kap % 8 == 0:
            assert not S.carry
            marks.append(len(k.L))
        S.q['x'].extend(x_items(kap + XD))
        for ft in range(8):
            def mf(ar, ft=ft, kap=kap):
                return [f"{MFMA} {a(ACC+(ft*4+tt)*4,4)}, {v(ar,4)}, {a(XR + (kap%8)*16 + tt*4, 4)}, {a(ACC+(ft*4+tt)*4,4)}" for tt in range(4)]
            pre = (lambda kap=kap: k.wait_vm([("x", kap)])) if ft == 0 else None
            S.group(f, mf, pre, next_waits=2 if ft == 7 else 1, vq='x' if ft % 2 == 0 else 'd'); f += 1
    marks.append(len(k.L))
    b0, b1, b2, b3 = [k.L[marks[i]:marks[i+1]] for i in range(4)]
    assert b1 == b2, "loop body not steady"
    assert len(b0) == len(b1)
    for i, (x, y) in enumerate(zip(b0, b1)):
        if x != y:
            assert x.startswith("s_waitcnt vmcnt") and y.startswith("s_waitcnt vmcnt"), (x, y)
            print("p3 first-iteration wait differs", x, y)
            b1[i] = f"s_waitcnt vmcnt({min(int(x[16:-1]), int(y[16:-1]))})"
    k.L[marks[0]:marks[4]] = [".p2align 6", "P3_loop:"] + b1 + ["s_sub_u32 s39, s39, 1", "s_cmp_lg_u32 s39, 0", "s_cbranch_scc1 P3_loop"] + b3
    k.e("s_barrier")
    k.e("s_lshl_b32 s36, s22, 14\nv_add_u32 v12, s36, v11")
    k.e("s_xor_b32 s36, s22, 2\ns_lshl_b32 s36, s36, 14\nv_add_u32 v13, s36, v11")
    k.e("s_cmp_eq_u32 s40, 0\ns_cbranch_scc1 P3_k0")
    for n in range(16): k.e(f"ds_write_b128 v12, {a(ACC + n*4, 4)} offset:{n*1024}")
    for n in range(64): k.e(f"v_accvgpr_read_b32 v{128+n}, a{ACC+64+n}")
    k.e("s_branch P3_red")
    k.e("P3_k0:")
    k.e("s_nop 4")
    for n in range(16): k.e(f"ds_write_b128 v12, {a(ACC + 64 + n*4, 4)} offset:{n*1024}")
    for n in range(64): k.e(f"v_accvgpr_read_b32 v{128+n}, a{ACC+n}")
    k.e("P3_red:")
    k.e("s_waitcnt lgkmcnt(0)\ns_barrier")
    for n in range(16): k.e(f"ds_read_b128 {v(64+n*4,4)}, v13 offset:{n*1024}")
    k.e("s_lshl_b32 s36, s20, 3\ns_add_u32 s36, s36, s21")
    k.e("s_lshr_b32 s42, s36, 1\ns_lshl_b32 s42, s42, 2")
    k.e("s_and_b32 s43, s36, 1\ns_lshl_b32 s43, s43, 4")
    k.e(f"s_lshl_b32 s50, s36, 16\ns_lshl_b32 s51, s22, 13\ns_add_u32 s50, s50, s51\ns_add_u32 s50, s50, {G_OFF}")
    k.e("s_lshl_b32 s51, s38, 15\ns_add_u32 s60, s50, s51\ns_xor_b32 s51, s51, 0x8000\ns_add_u32 s61, s50, s51")
    k.e("s_add_u32 s62, s60, 4096\ns_add_u32 s63, s61, 4096")
    k.e("s_lshl_b32 s50, s21, 8\ns_lshl_b32 s51, s40, 7\ns_add_u32 s50, s50, s51")
    k.e("v_lshrrev_b32 v14, 4, v0\nv_lshlrev_b32 v15, 3, v14")
    for n in range(16):
        k.e(f"s_waitcnt lgkmcnt({15-n})")
        for p in range(2): k.e(f"v_pk_add_f32 {v(128+n*4+2*p,2)}, {v(128+n*4+2*p,2)}, {v(64+n*4+2*p,2)}")
    k.e("s_cmp_eq_u32 s38, 0\ns_cbranch_scc1 P3_pack")
    for ft in range(4): k.e(f"buffer_load_dwordx2 v[{32+2*ft}:{33+2*ft}], v15, s[16:19], s50 offen offset:{32*ft}")
    k.e("s_waitcnt vmcnt(0)")
    for ft in range(4):
        k.e(f"v_lshlrev_b32 v{40+4*ft}, 16, v{32+2*ft}\nv_and_b32 v{41+4*ft}, 0xffff0000, v{32+2*ft}\nv_lshlrev_b32 v{42+4*ft}, 16, v{33+2*ft}\nv_and_b32 v{43+4*ft}, 0xffff0000, v{33+2*ft}")
    k.e(f"s_mov_b32 s64, {f32(-math.log2(math.e))}\ns_mov_b32 s65, {f32(-math.log2(math.e))}\ns_mov_b32 s66, 1.0\ns_mov_b32 s67, 1.0")
    for ft in range(4):
        for tt in range(4):
            x = 128 + (ft*4+tt)*4; t = 32
            for p in range(2): k.e(f"v_pk_add_f32 {v(x+2*p,2)}, {v(x+2*p,2)}, {v(40+4*ft+2*p,2)}")
            for p in range(2): k.e(f"v_pk_mul_f32 {v(t+2*p,2)}, {v(x+2*p,2)}, s[64:65]")
            for r in range(4): k.e(f"v_exp_f32 v{t+r}, v{t+r}")
            for p in range(2): k.e(f"v_pk_add_f32 {v(t+2*p,2)}, {v(t+2*p,2)}, s[66:67]")
            for r in range(4): k.e(f"v_rcp_f32 v{t+r}, v{t+r}")
            k.e("s_nop 0")
            for p in range(2): k.e(f"v_pk_mul_f32 {v(x+2*p,2)}, {v(x+2*p,2)}, {v(t+2*p,2)}")
    k.e("P3_pack:")
    for m in range(2):
        for tt in range(4):
            for b in range(2):
                x = 128 + ((2*m+b)*4+tt)*4; d = 192 + (m*4+tt)*4 + 2*b
                k.e(f"v_cvt_pk_bf16_f32 v{d}, v{x}, v{x+1}\nv_cvt_pk_bf16_f32 v{d+1}, v{x+2}, v{x+3}")
    for n in range(8):
        k.e(f"buffer_store_dwordx4 {v(192+n*4,4)}, v11, s[12:15], s{60 if n < 4 else 62} offen offset:{(n%4)*1024} sc1")
    k.e("s_waitcnt vmcnt(0)\ns_barrier")
    k.e("s_cmp_lg_u32 s22, 0\ns_cbranch_scc1 P3_wait")
    k.e("s_lshl_b32 s51, 1, s43\nv_mov_b32 v32, s51\nv_mov_b32 v33, 0")
    k.e("s_mov_b64 exec, 1")
    k.e("buffer_atomic_add v32, v33, s[56:59], s42 offen sc0")
    k.e("s_waitcnt vmcnt(0)")
    k.e("ds_write_b32 v33, v32 offset:65536-4")
    k.e("s_mov_b64 exec, -1")
    k.e("s_waitcnt lgkmcnt(0)")
    k.e("P3_wait:\ns_barrier")
    k.e("v_mov_b32 v33, 0\nds_read_b32 v32, v33 offset:65536-4\ns_waitcnt lgkmcnt(0)")
    k.e("v_readfirstlane_b32 s51, v32\ns_lshr_b32 s51, s51, s43\ns_and_b32 s51, s51, 0xffff")
    k.e("s_cmp_eq_u32 s51, 0\ns_cbranch_scc1 P3_end")
    for n in range(8):
        k.e(f"buffer_load_dwordx4 {v(224+n*4,4)}, v11, s[12:15], s{61 if n < 4 else 63} offen offset:{(n%4)*1024} sc1")
    k.e("v_and_b32 v34, 15, v0\nv_lshlrev_b32 v34, 11, v34\nv_add_u32 v35, v34, v15\nv_lshl_add_u32 v34, v14, 4, v34")
    k.e("s_lshl_b32 s51, s37, 17\ns_add_u32 s50, s50, s51")
    for tt in range(4):
        k.e(f"s_add_u32 s{68+tt}, s50, {tt*16*2048}")
    for m in range(2):
        for tt in range(4):
            for b in range(2):
                k.e(f"buffer_load_dwordx2 {v(64+(m*4+tt)*4+2*b,2)}, v35, s[8:11], s{68+tt} offen offset:{(2*m+b)*32}")
    k.e("s_waitcnt vmcnt(0)")
    for n in range(8):
        m, tt = divmod(n, 4)
        for d in range(4):
            A_, B_, X_ = 192+n*4+d, 224+n*4+d, 64+n*4+d
            k.e(f"v_lshlrev_b32 v40, 16, v{A_}\nv_and_b32 v41, 0xffff0000, v{A_}\nv_lshlrev_b32 v42, 16, v{B_}\nv_and_b32 v43, 0xffff0000, v{B_}")
            k.e("v_pk_mul_f32 v[40:41], v[40:41], v[42:43]")
            k.e(f"v_lshlrev_b32 v44, 16, v{X_}\nv_and_b32 v45, 0xffff0000, v{X_}")
            k.e("v_cvt_pk_bf16_f32 v40, v40, v41\nv_and_b32 v41, 0xffff0000, v40\nv_lshlrev_b32 v40, 16, v40")
            k.e("v_pk_add_f32 v[40:41], v[40:41], v[44:45]")
            k.e(f"v_cvt_pk_bf16_f32 v{A_}, v40, v41")
        b = 192 + n*4
        k.e("s_nop 1")
        k.e(f"v_permlane32_swap_b32 v{b}, v{b+2}\nv_permlane32_swap_b32 v{b+1}, v{b+3}\ns_nop 0")
        k.e(f"v_permlane16_swap_b32 v{b}, v{b+2}\nv_permlane16_swap_b32 v{b+1}, v{b+3}")
        k.e(f"buffer_store_dwordx4 {v(b,4)}, v34, s[52:55], s{68+tt} offen offset:{m*64}")
    k.e("P3_end:\ns_endpgm")
    return k, descriptor("p3_kernel", 512, 256, 80)

def main():
    out = sys.argv[1] if len(sys.argv) > 1 else f"cdna_kernels/{NAME}.s"
    ks = [gen_p1(), gen_p2(), gen_p3()]
    for k, _ in ks:
        for p in check_hazards(k.L): print("HAZARD", p)
    txt = "; generated by dev/gen.py\n"
    txt += "; @launch kernel=prep_kernel grid=(256,1,1) block=(512,1,1) lds=1024\n"
    txt += "; @launch kernel=p2_kernel grid=(256,1,1) block=(256,1,1) lds=131072\n"
    txt += "; @launch kernel=p3_kernel grid=(256,1,1) block=(256,1,1) lds=131072\n"
    txt += '.amdgcn_target "amdgcn-amd-amdhsa--gfx950"\n.text\n'
    for k, _ in ks: txt += k.text()
    txt += '.section .rodata,"a"\n'
    for _, d in ks: txt += ".p2align 6\n" + d
    open(out, "w").write(txt)
    print("wrote", out, len(txt), "bytes")
main()
```

```python
import sys, struct, math
from asmlib import Em, v, a, s, check_hazards

NAME = "recurrent_scan__sliding_block_cached__dense_activation_gelu__prompt"
MB = 1 << 20
XN_OFF, KV_OFF, O_OFF, H_OFF, G_OFF = 0, 4*MB, 8*MB, 24*MB, 40*MB
WS_BYTES = 256*MB
STAMP_OFF = 64*MB
STAMPS = '--stamps' in sys.argv
PRO = '--pro' in sys.argv
PF = '--nopf' not in sys.argv
PFG = '--pfg' in sys.argv
NOH = '--noh' in sys.argv
NT1 = ' nt' if '--nt1' in sys.argv else ''
NT3 = ' nt' if '--nt3' in sys.argv else ''
HSC = ' sc1' if '--sc1' in sys.argv else ''
PP = int(sys.argv[sys.argv.index('--pp')+1]) if '--pp' in sys.argv else 0
DQ = int(sys.argv[sys.argv.index('--dq')+1]) if '--dq' in sys.argv else 2
def f32(x): return "0x%08x" % struct.unpack("<I", struct.pack("<f", x))[0]
MFMA = "v_mfma_f32_16x16x32_bf16"

class K(Em):
    def __init__(self):
        super().__init__(); self.lg = []
    def lds(self, txt, tag=None):
        self.L.append(txt); self.lg.append(tag)
    def lg_after(self, tag):
        for i in range(len(self.lg)-1, -1, -1):
            if self.lg[i] == tag: return len(self.lg)-1-i
        raise KeyError(tag)
    def stamp(self, n):
        if STAMPS: self.e(f"s_memtime s[{76+4*n}:{77+4*n}]\ns_memrealtime s[{78+4*n}:{79+4*n}]")
    def stamp_out(self, kidx, nst, srd, wave_sgpr, label):
        if not STAMPS: return
        self.e(f"s_cmp_lg_u32 s{wave_sgpr}, 0\ns_cbranch_scc1 {label}")
        self.e("s_waitcnt lgkmcnt(0)")
        self.e(f"s_lshl_b32 s74, s2, 6\ns_add_u32 s74, s74, {STAMP_OFF + kidx*65536}\nv_mov_b32 v2, 0\ns_mov_b64 exec, 1")
        for n in range(nst):
            self.e(f"v_mov_b32 v4, s{76+4*n}\nv_mov_b32 v5, s{78+4*n}")
            self.e(f"buffer_store_dwordx2 v[4:5], v2, s[{srd}:{srd+3}], s74 offen offset:{8*n}\ns_waitcnt vmcnt(0)")
        self.e(f"{label}:")
    def srd(self, d, lo, hi, nbytes):
        self.e(f"s_mov_b32 s{d}, s{lo}\ns_and_b32 s{d+1}, s{hi}, 0xffff\ns_mov_b32 s{d+2}, {nbytes}\ns_mov_b32 s{d+3}, 0x20000")

def header(k, name):
    k.e(f".globl {name}\n.p2align 8\n.type {name},@function\n{name}:")

def descriptor(name, nv, accoff, ns=96):
    return f""".amdhsa_kernel {name}
  .amdhsa_next_free_vgpr {nv}
  .amdhsa_next_free_sgpr {ns}
  .amdhsa_accum_offset {accoff}
  .amdhsa_group_segment_fixed_size 0
  .amdhsa_kernarg_size 104
  .amdhsa_user_sgpr_count 2
  .amdhsa_user_sgpr_kernarg_segment_ptr 1
  .amdhsa_system_sgpr_workgroup_id_x 1
.end_amdhsa_kernel
"""

def reduce4(k, x, t, op):
    k.e(f"v_mov_b32 v{t}, v{x}\ns_nop 1\nv_permlane32_swap_b32 v{x}, v{t}\n{op} v{x}, v{x}, v{t}")
    k.e(f"v_mov_b32 v{t}, v{x}\ns_nop 1\nv_permlane16_swap_b32 v{x}, v{t}\n{op} v{x}, v{x}, v{t}")

def round_bf16(k, d, x):
    k.e(f"v_cvt_pk_bf16_f32 v{d}, v{x}, v{x}\nv_and_b32 v{d}, 0xffff0000, v{d}")

def gen_p1():
    k = K(); header(k, "prep_kernel")
    k.e("s_cmp_ge_u32 s2, 256\ns_cbranch_scc1 P1_end")
    k.stamp(0)
    k.e("s_load_dwordx4 s[4:7], s[0:1], 0")
    k.e("s_load_dwordx2 s[8:9], s[0:1], 16")
    k.e("s_load_dwordx2 s[10:11], s[0:1], 96")
    if PP:
        k.e("s_load_dwordx4 s[40:43], s[0:1], 24\ns_load_dwordx2 s[44:45], s[0:1], 48\ns_load_dwordx2 s[46:47], s[0:1], 64")
    k.e("v_lshrrev_b32 v1, 6, v0\nv_and_b32 v0, 63, v0\nv_readfirstlane_b32 s3, v1")
    k.e("v_and_b32 v2, 15, v0\nv_lshrrev_b32 v3, 4, v0\nv_lshlrev_b32 v4, 4, v0")
    k.e("s_waitcnt lgkmcnt(0)")
    k.srd(12, 4, 5, 4*MB); k.srd(16, 6, 7, 2*MB); k.srd(20, 8, 9, 2*MB); k.srd(24, 10, 11, WS_BYTES)
    if PP:
        k.e("s_cmp_ge_u32 s2, 128\ns_cselect_b32 s40, s44, s40\ns_cselect_b32 s41, s45, s41\ns_cselect_b32 s42, s46, s42\ns_cselect_b32 s43, s47, s43")
        k.e(f"s_mov_b32 s50, {8*MB}\ns_cselect_b32 s50, {7*MB}, s50")
        k.e("s_mov_b32 s52, s40\ns_and_b32 s53, s41, 0xffff\ns_mov_b32 s54, s50\ns_mov_b32 s55, 0x20000")
        k.e("s_mov_b32 s56, s42\ns_and_b32 s57, s43, 0xffff\ns_mov_b32 s58, s50\ns_mov_b32 s59, 0x20000")
        k.e("s_and_b32 s60, s2, 127\ns_lshl_b32 s60, s60, 3\ns_add_u32 s60, s60, s3\ns_lshl_b32 s60, s60, 13\nv_lshlrev_b32 v30, 7, v0")
    def touch():
        if PP & 1: k.e("buffer_load_dword v31, v30, s[52:55], s60 offen")
        if PP & 2: k.e("buffer_load_dword v31, v30, s[56:59], s60 offen")
    k.e("s_cmp_ge_u32 s2, 128\ns_cbranch_scc1 P1_kv")
    k.e("s_lshl_b32 s28, s2, 15\ns_lshl_b32 s29, s3, 8\ns_add_u32 s28, s28, s29")
    k.e("v_lshlrev_b32 v5, 11, v2\nv_lshl_add_u32 v5, v3, 4, v5")
    for i in range(4):
        k.e(f"buffer_load_dwordx4 v[{8+4*i}:{11+4*i}], v5, s[12:15], s28 offen offset:{64*i}")
    k.e("s_lshl_b32 s29, s3, 2\nv_lshlrev_b32 v6, 5, v2\nv_add_u32 v7, s29, v6")
    X = 32
    for i in range(4):
        k.e(f"s_waitcnt vmcnt({3-i})")
        for d in range(4):
            r = 8 + 4*i + d; o = X + 8*i + 2*d
            k.e(f"v_lshlrev_b32 v{o}, 16, v{r}\nv_and_b32 v{o+1}, 0xffff0000, v{r}")
    k.e(f"v_add_f32 v24, v{X}, v{X+1}\nv_add_f32 v25, v{X+2}, v{X+3}")
    for i in range(4, 32, 2):
        k.e(f"v_add_f32 v24, v24, v{X+i}\nv_add_f32 v25, v25, v{X+i+1}")
    k.e("v_add_f32 v24, v24, v25")
    reduce4(k, 24, 25, "v_add_f32")
    def xwave(off):
        k.e(f"ds_write_b32 v7, v24 offset:{off}\ns_waitcnt lgkmcnt(0)\ns_barrier")
        k.e(f"ds_read_b128 v[8:11], v6 offset:{off}\nds_read_b128 v[12:15], v6 offset:{off+16}\ns_waitcnt lgkmcnt(0)")
        k.e("v_add_f32 v8, v8, v9\nv_add_f32 v10, v10, v11\nv_add_f32 v12, v12, v13\nv_add_f32 v14, v14, v15")
        k.e("v_add_f32 v8, v8, v10\nv_add_f32 v12, v12, v14\nv_add_f32 v24, v8, v12")
        k.e(f"v_mul_f32 v24, {f32(1/1024)}, v24")
    xwave(0)
    k.e("v_mov_b32 v26, v24")
    k.e("v_mov_b32 v24, 0\nv_mov_b32 v25, 0")
    for i in range(0, 32, 2):
        k.e(f"v_sub_f32 v27, v{X+i}, v26\nv_sub_f32 v28, v{X+i+1}, v26\nv_fmac_f32 v24, v27, v27\nv_fmac_f32 v25, v28, v28")
    k.e("v_add_f32 v24, v24, v25")
    reduce4(k, 24, 25, "v_add_f32")
    xwave(512)
    round_bf16(k, 26, 26)
    round_bf16(k, 24, 24)
    k.e(f"v_add_f32 v24, {f32(1e-5)}, v24")
    round_bf16(k, 24, 24)
    k.e("v_sqrt_f32 v24, v24\ns_nop 0")
    round_bf16(k, 24, 24)
    k.e("v_rcp_f32 v24, v24\ns_nop 0")
    k.e("s_lshr_b32 s28, s2, 2\ns_lshl_b32 s28, s28, 17\ns_and_b32 s29, s2, 3\ns_lshl_b32 s29, s29, 10\ns_add_u32 s28, s28, s29")
    k.e("s_lshl_b32 s29, s3, 14\ns_add_u32 s28, s28, s29")
    for i in range(4):
        for d in range(4):
            o = X + 8*i + 2*d; r = 8 + 4*i + d
            k.e(f"v_sub_f32 v27, v{o}, v26\nv_sub_f32 v28, v{o+1}, v26\nv_cvt_pk_bf16_f32 v27, v27, v28")
            k.e(f"v_and_b32 v28, 0xffff0000, v27\nv_lshlrev_b32 v27, 16, v27\nv_mul_f32 v27, v27, v24\nv_mul_f32 v28, v28, v24")
            k.e(f"v_cvt_pk_bf16_f32 v{r}, v27, v28")
        k.e(f"buffer_store_dwordx4 v[{8+4*i}:{11+4*i}], v4, s[24:27], s28 offen")
        k.e("s_add_u32 s28, s28, 4096")
    if STAMPS: k.e("s_waitcnt vmcnt(0)")
    k.stamp(1); k.stamp_out(0, 2, 24, 3, "P1_so")
    if STAMPS: k.e("s_mov_b64 exec, -1")
    touch()
    k.e("s_endpgm")
    k.e("P1_kv:")
    k.e("s_sub_u32 s28, s2, 128")
    k.e("s_lshr_b32 s29, s28, 5\ns_and_b32 s30, s28, 31")
    k.e("s_lshl_b32 s31, s28, 13\ns_lshl_b32 s32, s3, 10\ns_add_u32 s31, s31, s32")
    k.e(f"s_add_u32 s31, s31, {KV_OFF}")
    k.e(f"s_lshl_b32 s29, s29, 19\ns_add_u32 s29, s29, {1536*256}")
    k.e("s_cmp_eq_u32 s30, 31\ns_cbranch_scc1 P1_v15")
    k.e("s_cmp_eq_u32 s30, 0\ns_cbranch_scc1 P1_k")
    k.e("s_bitcmp1_b32 s30, 0\ns_cbranch_scc0 P1_v")
    k.e("P1_k:")
    k.e("s_add_u32 s33, s30, 1\ns_lshr_b32 s33, s33, 1")
    k.e("s_lshl_b32 s33, s33, 13\ns_add_u32 s29, s29, s33")
    k.e("s_lshr_b32 s33, s3, 2\ns_lshl_b32 s33, s33, 12\ns_add_u32 s29, s29, s33")
    k.e("s_and_b32 s33, s3, 3\ns_lshl_b32 s33, s33, 6\ns_add_u32 s29, s29, s33")
    k.e("v_lshlrev_b32 v5, 8, v2\nv_lshl_add_u32 v5, v3, 3, v5")
    k.e("buffer_load_dwordx2 v[8:9], v5, s[16:19], s29 offen\nbuffer_load_dwordx2 v[10:11], v5, s[16:19], s29 offen offset:32")
    k.e("s_waitcnt vmcnt(0)\nbuffer_store_dwordx4 v[8:11], v4, s[24:27], s31 offen")
    touch()
    k.e("s_endpgm")
    k.e("P1_v15:\ns_mov_b32 s30, 32")
    k.e("P1_v:")
    k.e("s_lshr_b32 s33, s30, 1\ns_sub_u32 s33, s33, 1")
    k.e("s_lshl_b32 s33, s33, 13\ns_add_u32 s29, s29, s33")
    k.e("s_lshl_b32 s33, s3, 5\ns_add_u32 s29, s29, s33\ns_add_u32 s34, s29, 4096")
    k.e("v_lshlrev_b32 v5, 10, v3\nv_lshl_add_u32 v5, v2, 1, v5")
    for e in range(8):
        k.e(f"buffer_load_ushort v{12+e}, v5, s[20:23], s{29 if e < 4 else 34} offen offset:{(e%4)*256}")
    k.e("s_waitcnt vmcnt(0)")
    for d in range(4):
        k.e(f"v_lshl_or_b32 v{8+d}, v{13+2*d}, 16, v{12+2*d}")
    k.e("buffer_store_dwordx4 v[8:11], v4, s[24:27], s31 offen")
    touch()
    k.e("P1_end:\ns_endpgm")
    return k, descriptor("prep_kernel", 64, 64, 100)

LOOK = 7
class Stream:
    def __init__(self, k, frags, aring):
        self.k = k; self.frags = frags; self.aring = aring
        self.nread = 0
        self.q = {"x": [], "d": [], "p": []}
        self.carry = []
        self.valu = []
    def areg(self, f): return self.aring + (f % 8)*4
    def reads(self, f):
        return self.frags[f]["reads"](self.areg(f))
    def prime(self, n):
        for f in range(n):
            for r in self.reads(f): self.k.lds(r, ("f", f))
        self.nread = n
    def flush_valu(self, marker=None):
        while self.valu:
            if marker is not None and not any(m == marker for _, _, m in self.valu): break
            c, t, m = self.valu.pop(0); self.k.e(t)
    def flush_side(self):
        for t in self.carry: self.k.e(t)
        self.carry = []
        for q in self.q.values():
            emit_now(self.k, q); del q[:]
    def group(self, f, mf, pre=None, next_waits=1, vq=None, gv=2):
        k = self.k
        rd = []
        if f is not None and self.nread < len(self.frags):
            nf = self.nread
            assert nf == f + LOOK, (nf, f)
            if self.frags[nf].get("first"):
                st = self.frags[nf]["stage"]
                assert not any(it[2] == ("dma", st) for it in self.q["d"])
                k.wait_vm([("dma", st)]); k.e("s_barrier")
                if self.frags[nf].get("after_bar"): self.frags[nf]["after_bar"]()
            rd = self.reads(nf); self.nread += 1
        if pre: pre()
        if f is not None:
            k.e(f"s_waitcnt lgkmcnt({min(k.lg_after(('f', f)), 15)})")
        item = self.q[vq].pop(0) if vq and self.q[vq] else None
        ms = mf(self.areg(f) if f is not None else None)
        for i, m in enumerate(ms):
            k.e(m)
            cap = 2
            if i == len(ms) - 1: cap -= next_waits
            if rd:
                k.lds(rd.pop(0), ("f", self.nread - 1)); cap -= 1
            if item and i == 0 and item[0]:
                k.e(item[0]); cap -= 1
            if item and i == gv:
                for t in self.carry: k.e(t); cap -= 1
                self.carry = []
                k.vmem(item[1], item[2]); cap -= 1
                if item[3]: self.carry.append(item[3])
            while cap > 0:
                if self.carry and not (cap == 2 and self.valu and self.valu[0][0] == 2):
                    k.e(self.carry.pop(0)); cap -= 1
                elif self.valu and self.valu[0][0] <= cap:
                    c, t, mk = self.valu.pop(0); k.e(t); cap -= c
                else: break

def emit_now(k, items):
    for pre, txt, tag, post in items:
        if pre: k.e(pre); k.e("s_nop 0")
        k.vmem(txt, tag)
        if post: k.e(post)

def gen_p2():
    k = K(); header(k, "p2_kernel")
    QACC, XR, AR, LACC = 0, 128, 192, 128
    FACC, QF, SB, NEGM, ONES = 128, 64, 128, 192, 208
    k.e("s_cmp_ge_u32 s2, 256\ns_cbranch_scc1 P2_end")
    k.stamp(0)
    k.e("s_load_dwordx2 s[24:25], s[0:1], 24")
    k.e("s_load_dwordx4 s[28:31], s[0:1], 48")
    k.e("s_load_dwordx2 s[26:27], s[0:1], 96")
    k.e("s_load_dwordx2 s[56:57], s[0:1], 32\ns_load_dwordx2 s[58:59], s[0:1], 64")
    k.e("v_lshrrev_b32 v1, 6, v0\nv_and_b32 v0, 63, v0\nv_readfirstlane_b32 s22, v1")
    k.e("s_and_b32 s34, s2, 7\ns_lshr_b32 s35, s2, 3")
    k.e("s_and_b32 s20, s34, 1\ns_lshl_b32 s20, s20, 2\ns_and_b32 s36, s35, 3\ns_add_u32 s20, s20, s36")
    k.e("s_lshr_b32 s21, s34, 1\ns_lshl_b32 s21, s21, 3\ns_lshr_b32 s36, s35, 2\ns_add_u32 s21, s21, s36")
    k.e("s_lshl_b32 s37, s20, 2\ns_add_u32 s37, s37, s22")
    k.e("s_and_b32 s38, s21, 1")
    k.e("s_lshl_b32 s23, s22, 12\ns_lshl_b32 s39, s22, 13")
    k.e(f"v_lshlrev_b32 v11, 4, v0\ns_lshl_b32 s36, s37, 17\nv_add_u32 v10, s36, v11\nv_add_u32 v12, 0x10000, v11")
    k.e("v_lshrrev_b32 v32, 4, v0\nv_and_b32 v33, 15, v0")
    k.e("s_lshl_b32 s36, s22, 4\nv_add_u32 v34, s36, v32")
    k.e("s_lshl_b32 s40, s21, 8\ns_mul_i32 s41, s21, 224")
    k.e("s_movk_i32 s42, 7168")
    for h in range(2):
        k.e(f"v_or_b32 v35, {4*h}, v32\nv_lshlrev_b32 v35, 1, v35\nv_xor_b32 v35, v33, v35")
        k.e("v_lshlrev_b32 v36, 4, v35\nv_lshl_add_u32 v36, v34, 13, v36\nv_add_u32 v36, s40, v36")
        for i in (2*h, 2*h+1):
            k.e(f"v_add_u32 v{1+i}, {i*(4*8192-1024)}, v36")
        k.e("v_lshrrev_b32 v37, 1, v35\nv_add_u32 v38, s38, v37")
        k.e("v_cmp_ne_u32 vcc, 7, v38\ns_nop 1\nv_cndmask_b32 v38, 0, v38, vcc")
        k.e("v_and_b32 v39, 1, v35\nv_lshlrev_b32 v39, 4, v39\nv_lshl_add_u32 v38, v38, 5, v39")
        k.e("v_mul_lo_u32 v39, v34, s42\nv_add3_u32 v38, v38, v39, s41")
        k.e("v_mov_b32 v39, 0x40000000\nv_cmp_ne_u32 vcc, 7, v37\ns_nop 1\nv_cndmask_b32 v38, v39, v38, vcc")
        for i in (2*h, 2*h+1):
            k.e(f"v_add_u32 v{5+i}, {i*(4*7168-1024)}, v38")
    k.e("s_waitcnt lgkmcnt(0)")
    if PRO: k.stamp(1)
    k.srd(4, 24, 25, 1024*8192); k.srd(8, 28, 29, 1024*7168); k.srd(12, 26, 27, WS_BYTES); k.srd(16, 30, 31, 7168)
    k.e("s_mov_b32 s30, 0\ns_mov_b32 s31, 0\ns_mov_b32 s32, 0\ns_mov_b32 s33, 0")
    k.srd(60, 56, 57, 4096*2048); k.srd(64, 58, 59, 3584*2048)
    k.e("s_lshl_b32 s68, s2, 2\ns_add_u32 s68, s68, s22\ns_mul_i32 s69, s68, 7168\ns_lshl_b32 s68, s68, 13")
    k.e(f"v_lshlrev_b32 v13, 5, v0\nv_lshlrev_b32 v15, 3, v0")

    def dma_items(st):
        it = []
        slot = (st % 4)*32768
        if st < 16:
            for m in range(2):
                for i in range(4):
                    it.append((f"s_add_u32 m0, s23, {slot + m*16384}" if i == 0 else None,
                               f"buffer_load_dwordx4 v{1+4*m+i}, s[{4+4*m}:{7+4*m}], s{30+m} offen offset:{i*1024}{NT1} lds", ("dma", st),
                               f"s_add_u32 s{30+m}, s{30+m}, {64*(8192 if m == 0 else 7168)}" if i == 3 else None))
        elif st < 24:
            for m in range(2):
                for i in range(4):
                    it.append((f"s_add_u32 m0, s39, {slot + m*4096}" if i == 0 else None,
                               f"buffer_load_dwordx4 v9, s[12:15], s33 offen offset:{i*1024} lds", ("dma", st),
                               f"s_add_u32 s33, s33, {4096 if m == 0 else 32768-4096}" if i == 3 else None))
        if PF and 18 <= st < 26:
            n = st - 18
            it.append((None, f"buffer_load_dword v14, v13, s[{60+4*(n%2)}:{63+4*(n%2)}], s{68+n%2} offen offset:{(n//2%2)*2048}", "pf",
                       f"s_add_u32 s{68+n%2}, s{68+n%2}, 4096" if n//2 == 1 else None))
        return it
    def x_items(kap):
        if kap >= 32: return []
        return [(None, f"buffer_load_dwordx4 {a(XR + (kap%4)*16 + tt*4, 4)}, v10, s[12:15], s32 offen offset:{tt*1024}", ("x", kap),
                 "s_add_u32 s32, s32, 4096" if tt == 3 else None) for tt in range(4)]
    for it in (dma_items(0), x_items(0), x_items(1), dma_items(1), x_items(2)): emit_now(k, it)
    k.e("v_lshrrev_b32 v46, 4, v0\nv_lshlrev_b32 v46, 3, v46\nv_add_u32 v46, s41, v46")
    k.e("s_lshl_b32 s36, s38, 5\ns_xor_b32 s43, s38, 1\ns_mul_i32 s43, s43, 192")
    for i in range(6): k.vmem(f"buffer_load_dwordx2 v[{32+2*i}:{33+2*i}], v46, s[16:19], s36 offen offset:{32*i}", "bias")
    k.vmem("buffer_load_dwordx2 v[44:45], v46, s[16:19], s43 offen", "bias")
    emit_now(k, dma_items(2))
    if PRO: k.stamp(2)
    k.e(f"s_lshr_b32 s36, s21, 3\ns_lshl_b32 s36, s36, 18\ns_add_u32 s36, s36, s39\ns_add_u32 s36, s36, {KV_OFF}\nv_add_u32 v9, s36, v11")
    k.e("v_lshrrev_b32 v47, 4, v0\nv_bfe_u32 v48, v0, 2, 2")
    k.e("v_lshl_add_u32 v49, v47, 3, v48\nv_lshlrev_b32 v49, 8, v49")
    k.e("v_and_b32 v50, 3, v0\nv_lshl_add_u32 v49, v50, 3, v49")
    k.e("v_and_b32 v50, 1, v47\nv_lshl_or_b32 v50, v50, 2, v48")
    for t in range(8):
        k.e(f"v_xor_b32 v51, {t}, v50\nv_lshl_add_u32 v{16+t}, v51, 5, v49\nv_add_u32 v{24+t}, 0x10000, v{16+t}")
    for i in range(128): k.e(f"v_accvgpr_write_b32 a{QACC+i}, 0")
    if PRO: k.stamp(3)
    k.wait_vm(["bias"])
    if PRO: k.stamp(4)
    for ft in range(7):
        b = FACC + ft*16
        k.e(f"v_lshlrev_b32 v{b}, 16, v{32+2*ft}\nv_and_b32 v{b+1}, 0xffff0000, v{32+2*ft}")
        k.e(f"v_lshlrev_b32 v{b+2}, 16, v{33+2*ft}\nv_and_b32 v{b+3}, 0xffff0000, v{33+2*ft}")
        for tt in range(1, 4):
            for r in range(4): k.e(f"v_mov_b32 v{b+4*tt+r}, v{b+r}")

    frags = []
    S = None
    def after_bar(st):
        return lambda: S.q['d'].extend(dma_items(st + 2))
    for st in range(16):
        for ks in range(2):
            for ft in range(15):
                m, t = divmod(ft, 8)
                win = 24 if (st % 4) >= 2 else 16
                off = (st % 2)*32768 + m*16384 + ks*8192
                frags.append(dict(stage=st, first=(ks == 0 and ft == 0 and st > 0), after_bar=after_bar(st),
                    reads=lambda r, win=win, t=t, off=off: [f"ds_read_b64_tr_b16 {a(r,2)}, v{win+t} offset:{off}", f"ds_read_b64_tr_b16 {a(r+2,2)}, v{win+t} offset:{off+1024}"]))
    NG1 = len(frags)
    for st in range(16, 24):
        for n in range(32):
            off = (st % 2)*32768 + n*1024
            win = 12 if (st % 4) >= 2 else 11
            frags.append(dict(stage=st, first=(n == 0), after_bar=after_bar(st),
                reads=lambda r, win=win, off=off: [f"ds_read_b128 {a(r,4)}, v{win} offset:{off}"]))
    S = Stream(k, frags, AR)
    k.wait_vm([("dma", 0)]); k.e("s_barrier")
    k.stamp(5 if PRO else 1)
    if PRO: k.stamp = lambda n: None
    S.prime(LOOK)
    f = 0
    for kap in range(32):
        S.q['x'].extend(x_items(kap + 3))
        if PFG and kap < 30:
            if kap < 16: S.q['p'].append((None, f"buffer_load_dword v14, v15, s[60:63], s68 offen", "pf", "s_add_u32 s68, s68, 512"))
            else: S.q['p'].append((None, f"buffer_load_dword v14, v15, s[64:67], s69 offen", "pf", "s_add_u32 s69, s69, 512"))
        for ft in range(15):
            def mf(ar, ft=ft, kap=kap):
                out = []
                for tt in range(4):
                    acc = a(QACC + (ft*4+tt)*4, 4) if ft < 8 else v(FACC + ((ft-8)*4+tt)*4, 4)
                    out.append(f"{MFMA} {acc}, {a(ar,4)}, {a(XR + (kap%4)*16 + tt*4, 4)}, {acc}")
                return out
            pre = (lambda kap=kap: k.wait_vm([("x", kap)])) if ft == 0 else None
            S.group(f, mf, pre, next_waits=2 if ft == 14 else 1, vq={1: 'x', 3: 'd', 2: 'p'}.get(ft % 4) if ft < 14 else 'd')
            f += 1
    S.flush_side()
    k.stamp(2)
    qs = (128 ** -0.5) * math.log2(math.e)
    k.e(f"s_mov_b32 s44, {f32(qs)}\ns_mov_b32 s45, {f32(qs)}")
    T = 32
    for qt in range(4):
        for ks in range(4):
            for b in range(2):
                src = QACC + ((2*ks+b)*4 + qt)*4
                for r in range(4): k.e(f"v_accvgpr_read_b32 v{T+4*b+r}, a{src+r}")
            for p in range(4): k.e(f"v_pk_mul_f32 {v(T+2*p,2)}, {v(T+2*p,2)}, s[44:45]")
            for p in range(4): k.e(f"v_cvt_pk_bf16_f32 v{QF+(qt*4+ks)*4+p}, v{T+2*p}, v{T+2*p+1}")
    kk = 2*math.sqrt(2/math.pi)*math.log2(math.e)
    k.e(f"s_mov_b32 s46, {f32(-0.044715*kk)}\ns_mov_b32 s47, {f32(-0.044715*kk)}")
    k.e(f"v_mov_b32 v48, {f32(-kk)}\nv_mov_b32 v49, {f32(-kk)}")
    k.e("s_mov_b32 s48, 1.0\ns_mov_b32 s49, 1.0")
    k.e(f"s_mul_i32 s36, s37, 458752\ns_lshr_b32 s40, s21, 1\ns_mul_i32 s40, s40, {7*4096}\ns_add_u32 s36, s36, s40\ns_add_u32 s36, s36, {H_OFF}")
    k.e(f"s_add_u32 s41, s36, {3*4096}\ns_lshl_b32 s40, s38, 3\ns_add_u32 s41, s41, s40")
    k.e("s_lshl_b32 s40, s38, 14\ns_add_u32 s36, s36, s40")
    def gelu4(x, dst):
        t = 32
        for p in range(2): k.e(f"v_pk_mul_f32 {v(t+2*p,2)}, {v(x+2*p,2)}, {v(x+2*p,2)}")
        for p in range(2): k.e(f"v_pk_fma_f32 {v(t+2*p,2)}, {v(t+2*p,2)}, s[46:47], v[48:49]")
        for p in range(2): k.e(f"v_pk_mul_f32 {v(t+2*p,2)}, {v(t+2*p,2)}, {v(x+2*p,2)}")
        for r in range(4): k.e(f"v_exp_f32 v{t+r}, v{t+r}")
        for p in range(2): k.e(f"v_pk_add_f32 {v(t+2*p,2)}, {v(t+2*p,2)}, s[48:49]")
        for r in range(4): k.e(f"v_rcp_f32 v{t+r}, v{t+r}")
        for p in range(2): k.e(f"v_pk_mul_f32 {v(t+2*p,2)}, {v(t+2*p,2)}, {v(x+2*p,2)}")
        for p in range(2): k.e(f"v_cvt_pk_bf16_f32 v{dst+p}, v{t+2*p}, v{t+2*p+1}")
    n = 0
    for m in range(3):
        for tt in range(4):
            d = 240 + (n % 4)*4; n += 1
            gelu4(FACC + ((2*m)*4+tt)*4, d); gelu4(FACC + ((2*m+1)*4+tt)*4, d+2)
            if not NOH: k.vmem(f"buffer_store_dwordx4 {v(d,4)}, v11, s[12:15], s36 offen offset:{tt*1024}{HSC}", "hst")
        k.e("s_add_u32 s36, s36, 4096")
    for tt in range(4):
        d = 240 + (n % 4)*4; n += 1
        gelu4(FACC + (6*4+tt)*4, d)
        if not NOH: k.vmem(f"buffer_store_dwordx2 {v(d,2)}, v11, s[12:15], s41 offen offset:{tt*1024}{HSC}", "hst")
    k.e("P2_attn_init:")
    k.stamp(3)
    for r in range(4): k.e(f"v_mov_b32 v{ONES+r}, 0x3f803f80")
    def sreg(u, qt, kt): return SB + (u % 2)*32 + qt*8 + kt*4
    def qk_groups(u):
        nonlocal f
        for kt in range(2):
            for ks in range(4):
                def mf(ar, kt=kt, ks=ks):
                    out = []
                    for qt in range(4):
                        d = v(sreg(u, qt, kt), 4)
                        c = d if ks > 0 else ("0" if u < 2 else v(NEGM + qt*4, 4))
                        out.append(f"{MFMA} {d}, {a(ar,4)}, {v(QF+(qt*4+ks)*4,4)}, {c}")
                    return out
                S.group(f, mf, vq='d' if f % DQ == 1 else None, gv=3); f += 1
    def soft_tasks(u):
        tk = []
        if u == 0:
            tk.append((1, "s_nop 7", u))
            for qt in range(4):
                b = sreg(0, qt, 0); m = NEGM + qt*4
                tk += [(1, f"v_max3_f32 v{m}, v{b}, v{b+1}, v{b+2}", u), (1, f"v_max3_f32 v{m}, v{m}, v{b+3}, v{b+4}", u),
                       (1, f"v_max3_f32 v{m}, v{m}, v{b+5}, v{b+6}", u), (1, f"v_max_f32 v{m}, v{m}, v{b+7}", u)]
            for sw in ("32", "16"):
                for qt in range(4): tk.append((1, f"v_mov_b32 v{NEGM+qt*4+1}, v{NEGM+qt*4}", u))
                tk.append((1, "s_nop 1", u))
                for qt in range(4): tk.append((1, f"v_permlane{sw}_swap_b32 v{NEGM+qt*4}, v{NEGM+qt*4+1}", u))
                for qt in range(4): tk.append((1, f"v_max_f32 v{NEGM+qt*4}, v{NEGM+qt*4}, v{NEGM+qt*4+1}", u))
            for qt in range(4):
                tk.append((1, f"v_sub_f32 v{NEGM+qt*4}, 0, v{NEGM+qt*4}", u))
                for r in range(1, 4): tk.append((1, f"v_mov_b32 v{NEGM+qt*4+r}, v{NEGM+qt*4}", u))
        for qt in range(4):
            b = sreg(u, qt, 0)
            if u < 2:
                for r in range(8): tk.append((1, f"v_add_f32 v{b+r}, v{b+r}, v{NEGM+qt*4}", u))
            order = []
            for p in range(4):
                order += [(2, f"v_exp_f32 v{b+2*p}, v{b+2*p}", u), (2, f"v_exp_f32 v{b+2*p+1}, v{b+2*p+1}", u)]
                if p > 0: order.append((1, f"v_cvt_pk_bf16_f32 v{b+p-1}, v{b+2*p-2}, v{b+2*p-1}", u))
            tk += order
            tk.append(("late", f"v_cvt_pk_bf16_f32 v{b+3}, v{b+6}, v{b+7}", u))
        out = []; pend = None; cnt = 0
        for t in tk:
            if t[0] == "late":
                pend = (1, t[1], t[2]); cnt = 0; continue
            out.append(t)
            if pend is not None:
                cnt += 1
                if cnt == 2: out.append(pend); pend = None
        if pend is not None: out += [(1, "s_nop 0", u), pend]
        return out
    def pv_groups(u):
        nonlocal f
        S.flush_valu(u)
        k.e("s_nop 1")
        first = u == 0
        for dt in range(8):
            def mf(ar, dt=dt):
                out = []
                for qt in range(4):
                    d = a(QACC + (dt*4+qt)*4, 4)
                    out.append(f"{MFMA} {d}, {a(ar,4)}, {v(sreg(u, qt, 0),4)}, {'0' if first else d}")
                return out
            S.group(f, mf, next_waits=0 if dt == 7 else 1, vq='d' if f % DQ == 1 else None, gv=3); f += 1
        def mfs(_):
            return [f"{MFMA} {a(LACC+qt*4,4)}, {v(ONES,4)}, {v(sreg(u, qt, 0),4)}, {'0' if first else a(LACC+qt*4,4)}" for qt in range(4)]
        S.group(None, mfs)
    qk_groups(0)
    S.valu.extend(soft_tasks(0))
    for u in range(16):
        if u + 1 < 16:
            qk_groups(u + 1)
            if u + 1 < 16:
                pend = soft_tasks(u + 1)
        S.flush_valu(u)
        if u + 1 < 16:
            S.valu.extend(pend)
        pv_groups(u)
    assert f == len(frags)
    S.flush_side()
    k.stamp(4)
    k.e("s_mov_b32 s50, 0")
    k.e("P2_norm:")
    k.e("s_nop 7")
    for qt in range(4): k.e(f"v_accvgpr_read_b32 v{40+qt}, a{LACC+qt*4}")
    k.e(f"v_max3_f32 v44, v40, v41, v42\nv_max_f32 v44, v44, v43\nv_add_f32 v45, v40, v41\nv_add_f32 v46, v42, v43\nv_add_f32 v45, v45, v46")
    k.e(f"s_mov_b32 s51, {f32(2.0**30)}")
    k.e("v_cmp_nge_f32 vcc, s51, v45")
    k.e("s_cmp_lg_u32 s50, 0\ns_cbranch_scc1 P2_store")
    k.e("s_nop 0\ns_cbranch_vccnz P2_slow")
    k.e("P2_store:")
    for qt in range(4):
        k.e(f"v_rcp_f32 v{48+2*qt}, v{40+qt}")
    k.e("s_nop 0")
    for qt in range(4): k.e(f"v_mov_b32 v{49+2*qt}, v{48+2*qt}")
    k.e(f"s_lshl_b32 s36, s37, 19\ns_lshl_b32 s40, s21, 14\ns_add_u32 s36, s36, s40\ns_add_u32 s36, s36, {O_OFF}")
    n = 0
    for m in range(4):
        for qt in range(4):
            d = 240 + (n % 4)*4; n += 1
            for b in range(2):
                src = QACC + ((2*m+b)*4+qt)*4
                for r in range(4): k.e(f"v_accvgpr_read_b32 v{T+4*b+r}, a{src+r}")
            for p in range(4): k.e(f"v_pk_mul_f32 {v(T+2*p,2)}, {v(T+2*p,2)}, {v(48+2*qt,2)}")
            for p in range(4): k.e(f"v_cvt_pk_bf16_f32 v{d+p}, v{T+2*p}, v{T+2*p+1}")
            k.vmem(f"buffer_store_dwordx4 {v(d,4)}, v11, s[12:15], s36 offen offset:{qt*1024}{HSC}", "ost")
        k.e("s_add_u32 s36, s36, 4096")
    if STAMPS: k.e("s_waitcnt vmcnt(0)")
    k.stamp(5); k.stamp_out(1, 6, 12, 22, "P2_so")
    k.e("P2_end:\ns_endpgm")
    k.e("P2_slow:")
    k.e("s_mov_b32 s50, 1")
    k.e(f"s_lshr_b32 s52, s21, 3\ns_lshl_b32 s52, s52, 18\ns_add_u32 s52, s52, {KV_OFF}")
    def kblock_off():
        k.e("s_lshl_b32 s54, s53, 1\ns_max_u32 s54, s54, 1\ns_sub_u32 s54, s54, 1\ns_lshl_b32 s54, s54, 13\ns_add_u32 s54, s54, s52\ns_add_u32 s55, s54, 4096")
    def load8():
        for n in range(8): k.e(f"buffer_load_dwordx4 {a(AR+n*4,4)}, v11, s[12:15], s{54 + n//4} offen offset:{(n%4)*1024}")
        k.e("s_waitcnt vmcnt(0)")
    def qk(cneg):
        for kt in range(2):
            for ks in range(4):
                for qt in range(4):
                    d = v(sreg(0, qt, kt), 4)
                    c = d if ks > 0 else (v(NEGM+qt*4, 4) if cneg else "0")
                    k.e(f"{MFMA} {d}, {a(AR+(kt*4+ks)*4,4)}, {v(QF+(qt*4+ks)*4,4)}, {c}")
        k.e("s_nop 7")
    for qt in range(4): k.e(f"v_mov_b32 v{NEGM+qt*4}, 0xff800000")
    k.e("s_mov_b32 s53, 0\nP2_slow1:")
    kblock_off(); load8(); qk(False)
    for qt in range(4):
        b = sreg(0, qt, 0); m = NEGM + qt*4
        for p in range(4): k.e(f"v_max3_f32 v{m}, v{m}, v{b+2*p}, v{b+2*p+1}")
    k.e("s_add_u32 s53, s53, 1\ns_cmp_lt_u32 s53, 16\ns_cbranch_scc1 P2_slow1")
    for qt in range(4):
        reduce4(k, NEGM+qt*4, NEGM+qt*4+1, "v_max_f32")
        k.e(f"v_sub_f32 v{NEGM+qt*4}, 0, v{NEGM+qt*4}")
        for r in range(1, 4): k.e(f"v_mov_b32 v{NEGM+qt*4+r}, v{NEGM+qt*4}")
    for i in range(128): k.e(f"v_accvgpr_write_b32 a{QACC+i}, 0")
    for i in range(16): k.e(f"v_accvgpr_write_b32 a{LACC+i}, 0")
    k.e("s_mov_b32 s53, 0\nP2_slow2:")
    kblock_off(); load8(); qk(True)
    for qt in range(4):
        b = sreg(0, qt, 0)
        for r in range(8): k.e(f"v_exp_f32 v{b+r}, v{b+r}")
        k.e("s_nop 0")
        for p in range(4): k.e(f"v_cvt_pk_bf16_f32 v{b+p}, v{b+2*p}, v{b+2*p+1}")
    k.e("s_lshl_b32 s54, s53, 1\ns_add_u32 s54, s54, 2\ns_min_u32 s54, s54, 31\ns_lshl_b32 s54, s54, 13\ns_add_u32 s54, s54, s52\ns_add_u32 s55, s54, 4096")
    load8()
    for dt in range(8):
        for qt in range(4):
            d = a(QACC + (dt*4+qt)*4, 4)
            k.e(f"{MFMA} {d}, {a(AR+dt*4,4)}, {v(sreg(0, qt, 0),4)}, {d}")
    for qt in range(4): k.e(f"{MFMA} {a(LACC+qt*4,4)}, {v(ONES,4)}, {v(sreg(0, qt, 0),4)}, {a(LACC+qt*4,4)}")
    k.e("s_nop 7")
    k.e("s_add_u32 s53, s53, 1\ns_cmp_lt_u32 s53, 16\ns_cbranch_scc1 P2_slow2")
    k.e("s_branch P2_norm")
    return k, descriptor("p2_kernel", 512, 256, 100)

def gen_p3():
    k = K(); header(k, "p3_kernel")
    ACC, XR, AR = 0, 128, 64
    k.e("s_cmp_ge_u32 s2, 256\ns_cbranch_scc1 P3_end")
    k.stamp(0)
    k.e("s_load_dwordx2 s[24:25], s[0:1], 32")
    k.e("s_load_dwordx4 s[28:31], s[0:1], 64")
    k.e("s_load_dwordx4 s[44:47], s[0:1], 80")
    k.e("s_load_dwordx2 s[26:27], s[0:1], 96")
    k.e("s_load_dwordx2 s[48:49], s[0:1], 0")
    k.e("v_lshrrev_b32 v1, 6, v0\nv_and_b32 v0, 63, v0\nv_readfirstlane_b32 s22, v1")
    k.e("s_and_b32 s34, s2, 7\ns_lshr_b32 s35, s2, 3")
    k.e("s_and_b32 s38, s34, 1")
    k.e("s_bfe_u32 s20, s34, 0x10001\ns_lshl_b32 s20, s20, 3\ns_and_b32 s36, s35, 7\ns_add_u32 s20, s20, s36")
    k.e("s_lshr_b32 s21, s34, 2\ns_lshl_b32 s21, s21, 2\ns_lshr_b32 s36, s35, 3\ns_add_u32 s21, s21, s36")
    k.e("s_lshr_b32 s40, s22, 1\ns_and_b32 s41, s22, 1")
    k.e("s_lshl_b32 s37, s20, 1\ns_add_u32 s37, s37, s41")
    k.e("s_lshl_b32 s23, s22, 13")
    k.e("v_lshlrev_b32 v11, 4, v0")
    k.e(f"s_cmp_eq_u32 s38, 0\ns_mov_b32 s36, 458752\ns_cselect_b32 s36, 524288, s36\ns_mov_b32 s42, {H_OFF}\ns_cselect_b32 s42, {O_OFF}, s42")
    k.e("s_cselect_b32 s39, 7, 6")
    k.e("s_mul_i32 s36, s36, s37\ns_add_u32 s36, s36, s42\ns_lshl_b32 s42, s40, 13\ns_add_u32 s36, s36, s42\nv_add_u32 v10, s36, v11")
    k.e("v_lshrrev_b32 v32, 4, v0\nv_and_b32 v33, 15, v0")
    k.e("s_lshl_b32 s36, s22, 5\nv_add_u32 v34, s36, v32\ns_lshl_b32 s42, s21, 8")
    for h in range(2):
        k.e(f"v_or_b32 v35, {4*h}, v32\nv_lshlrev_b32 v35, 1, v35\nv_xor_b32 v35, v33, v35")
        k.e("v_lshlrev_b32 v36, 4, v35\nv_lshl_add_u32 v36, v34, 11, v36\nv_add_u32 v36, s42, v36")
        for i in range(h, 8, 2):
            k.e(f"v_add_u32 v{1+i}, {i*4*2048 - (i%4)*1024}, v36")
    k.e("s_waitcnt lgkmcnt(0)")
    k.e("s_cmp_eq_u32 s38, 0\ns_cselect_b32 s24, s24, s28\ns_cselect_b32 s25, s25, s29")
    k.e(f"s_mov_b32 s4, s24\ns_and_b32 s5, s25, 0xffff\ns_mov_b32 s6, {3584*2048}\ns_cmp_eq_u32 s38, 0\ns_cselect_b32 s6, {4096*2048}, s6\ns_mov_b32 s7, 0x20000")
    k.srd(12, 26, 27, WS_BYTES); k.srd(16, 30, 31, 2048); k.srd(8, 48, 49, 4*MB); k.srd(52, 44, 45, 4*MB); k.srd(56, 46, 47, 256)
    k.e("s_mov_b32 s30, 0\ns_mov_b32 s32, 0")
    NST = 16
    def dma_items(st):
        if st >= NST: return []
        return [(f"s_add_u32 m0, s23, {(st%4)*32768 + (i//4)*4096}" if i % 4 == 0 else None,
                 f"buffer_load_dwordx4 v{1+i}, s[4:7], s30 offen offset:{(i%4)*1024}{NT3} lds", ("dma", st),
                 f"s_add_u32 s30, s30, {128*2048}" if i == 7 else None) for i in range(8)]
    def x_items(kap):
        if kap >= 2*NST: return []
        return [(None, f"buffer_load_dwordx4 {a(XR + (kap%8)*16 + tt*4, 4)}, v10, s[12:15], s32 offen offset:{tt*1024}", ("x", kap),
                 f"s_add_u32 s32, s32, {4096 if kap % 2 == 0 else 12288}" if tt == 3 else None) for tt in range(4)]
    XD = 5
    for it in (dma_items(0), x_items(0), x_items(1), dma_items(1), x_items(2), x_items(3), dma_items(2)[:4], x_items(4)): emit_now(k, it)
    k.e("v_lshrrev_b32 v47, 2, v0\nv_and_b32 v50, 7, v47\nv_lshlrev_b32 v49, 8, v47\nv_and_b32 v48, 3, v0\nv_lshl_add_u32 v49, v48, 3, v49")
    k.e("s_lshl_b32 s36, s40, 14\nv_add_u32 v49, s36, v49")
    for t in range(8):
        k.e(f"v_xor_b32 v51, {t}, v50\nv_lshl_add_u32 v{16+t}, v51, 5, v49\nv_add_u32 v{24+t}, 0x10000, v{16+t}")
    for i in range(128): k.e(f"v_accvgpr_write_b32 a{ACC+i}, 0")
    frags = []
    S = None
    def after_bar(st): return lambda: S.q['d'].extend(dma_items(st + 2))
    for st in range(NST):
        for ks in range(2):
            for ft in range(8):
                win = 24 if (st % 4) >= 2 else 16
                off = (st % 2)*32768 + ks*8192
                frags.append(dict(stage=st, first=(ks == 0 and ft == 0 and st > 0), after_bar=after_bar(st),
                    reads=lambda r, win=win, ft=ft, off=off: [f"ds_read_b64_tr_b16 {v(r,2)}, v{win+ft} offset:{off}", f"ds_read_b64_tr_b16 {v(r+2,2)}, v{win+ft} offset:{off+4096}"]))
    S = Stream(k, frags, AR)
    k.wait_vm([("dma", 0)]); k.e("s_barrier")
    k.stamp(1)
    S.prime(LOOK)
    S.q['d'].extend(dma_items(2)[4:])
    marks = []
    f = 0
    for kap in range(2*NST):
        if kap % 8 == 0:
            assert not S.carry
            marks.append(len(k.L))
        S.q['x'].extend(x_items(kap + XD))
        for ft in range(8):
            def mf(ar, ft=ft, kap=kap):
                return [f"{MFMA} {a(ACC+(ft*4+tt)*4,4)}, {v(ar,4)}, {a(XR + (kap%8)*16 + tt*4, 4)}, {a(ACC+(ft*4+tt)*4,4)}" for tt in range(4)]
            pre = (lambda kap=kap: k.wait_vm([("x", kap)])) if ft == 0 else None
            S.group(f, mf, pre, next_waits=2 if ft == 7 else 1, vq='x' if ft % 2 == 0 else 'd'); f += 1
    marks.append(len(k.L))
    b0, b1, b2, b3 = [k.L[marks[i]:marks[i+1]] for i in range(4)]
    assert b1 == b2, "loop body not steady"
    assert len(b0) == len(b1)
    for i, (x, y) in enumerate(zip(b0, b1)):
        if x != y:
            assert x.startswith("s_waitcnt vmcnt") and y.startswith("s_waitcnt vmcnt"), (x, y)
            print("p3 first-iteration wait differs", x, y)
            b1[i] = f"s_waitcnt vmcnt({min(int(x[16:-1]), int(y[16:-1]))})"
    k.L[marks[0]:marks[4]] = [".p2align 6", "P3_loop:"] + b1 + ["s_sub_u32 s39, s39, 1", "s_cmp_lg_u32 s39, 0", "s_cbranch_scc1 P3_loop"] + b3
    k.stamp(2)
    k.e("s_barrier")
    k.e("s_lshl_b32 s36, s22, 14\nv_add_u32 v12, s36, v11")
    k.e("s_xor_b32 s36, s22, 2\ns_lshl_b32 s36, s36, 14\nv_add_u32 v13, s36, v11")
    k.e("s_cmp_eq_u32 s40, 0\ns_cbranch_scc1 P3_k0")
    for n in range(16): k.e(f"ds_write_b128 v12, {a(ACC + n*4, 4)} offset:{n*1024}")
    for n in range(64): k.e(f"v_accvgpr_read_b32 v{128+n}, a{ACC+64+n}")
    k.e("s_branch P3_red")
    k.e("P3_k0:")
    k.e("s_nop 4")
    for n in range(16): k.e(f"ds_write_b128 v12, {a(ACC + 64 + n*4, 4)} offset:{n*1024}")
    for n in range(64): k.e(f"v_accvgpr_read_b32 v{128+n}, a{ACC+n}")
    k.e("P3_red:")
    k.e("s_waitcnt lgkmcnt(0)\ns_barrier")
    for n in range(16): k.e(f"ds_read_b128 {v(64+n*4,4)}, v13 offset:{n*1024}")
    k.e("s_lshl_b32 s36, s20, 3\ns_add_u32 s36, s36, s21")
    k.e("s_lshr_b32 s42, s36, 1\ns_lshl_b32 s42, s42, 2")
    k.e("s_and_b32 s43, s36, 1\ns_lshl_b32 s43, s43, 4")
    k.e(f"s_lshl_b32 s50, s36, 16\ns_lshl_b32 s51, s22, 13\ns_add_u32 s50, s50, s51\ns_add_u32 s50, s50, {G_OFF}")
    k.e("s_lshl_b32 s51, s38, 15\ns_add_u32 s60, s50, s51\ns_xor_b32 s51, s51, 0x8000\ns_add_u32 s61, s50, s51")
    k.e("s_add_u32 s62, s60, 4096\ns_add_u32 s63, s61, 4096")
    k.e("s_lshl_b32 s50, s21, 8\ns_lshl_b32 s51, s40, 7\ns_add_u32 s50, s50, s51")
    k.e("v_lshrrev_b32 v14, 4, v0\nv_lshlrev_b32 v15, 3, v14")
    for n in range(16):
        k.e(f"s_waitcnt lgkmcnt({15-n})")
        for p in range(2): k.e(f"v_pk_add_f32 {v(128+n*4+2*p,2)}, {v(128+n*4+2*p,2)}, {v(64+n*4+2*p,2)}")
    k.e("s_cmp_eq_u32 s38, 0\ns_cbranch_scc1 P3_pack")
    for ft in range(4): k.e(f"buffer_load_dwordx2 v[{32+2*ft}:{33+2*ft}], v15, s[16:19], s50 offen offset:{32*ft}")
    k.e("s_waitcnt vmcnt(0)")
    for ft in range(4):
        k.e(f"v_lshlrev_b32 v{40+4*ft}, 16, v{32+2*ft}\nv_and_b32 v{41+4*ft}, 0xffff0000, v{32+2*ft}\nv_lshlrev_b32 v{42+4*ft}, 16, v{33+2*ft}\nv_and_b32 v{43+4*ft}, 0xffff0000, v{33+2*ft}")
    k.e(f"s_mov_b32 s64, {f32(-math.log2(math.e))}\ns_mov_b32 s65, {f32(-math.log2(math.e))}\ns_mov_b32 s66, 1.0\ns_mov_b32 s67, 1.0")
    for ft in range(4):
        for tt in range(4):
            x = 128 + (ft*4+tt)*4; t = 32
            for p in range(2): k.e(f"v_pk_add_f32 {v(x+2*p,2)}, {v(x+2*p,2)}, {v(40+4*ft+2*p,2)}")
            for p in range(2): k.e(f"v_pk_mul_f32 {v(t+2*p,2)}, {v(x+2*p,2)}, s[64:65]")
            for r in range(4): k.e(f"v_exp_f32 v{t+r}, v{t+r}")
            for p in range(2): k.e(f"v_pk_add_f32 {v(t+2*p,2)}, {v(t+2*p,2)}, s[66:67]")
            for r in range(4): k.e(f"v_rcp_f32 v{t+r}, v{t+r}")
            k.e("s_nop 0")
            for p in range(2): k.e(f"v_pk_mul_f32 {v(x+2*p,2)}, {v(x+2*p,2)}, {v(t+2*p,2)}")
    k.e("P3_pack:")
    for m in range(2):
        for tt in range(4):
            for b in range(2):
                x = 128 + ((2*m+b)*4+tt)*4; d = 192 + (m*4+tt)*4 + 2*b
                k.e(f"v_cvt_pk_bf16_f32 v{d}, v{x}, v{x+1}\nv_cvt_pk_bf16_f32 v{d+1}, v{x+2}, v{x+3}")
    k.stamp(3)
    for n in range(8):
        k.e(f"buffer_store_dwordx4 {v(192+n*4,4)}, v11, s[12:15], s{60 if n < 4 else 62} offen offset:{(n%4)*1024} sc1")
    k.e("s_waitcnt vmcnt(0)\ns_barrier")
    k.e("s_cmp_lg_u32 s22, 0\ns_cbranch_scc1 P3_wait")
    k.e("s_lshl_b32 s51, 1, s43\nv_mov_b32 v32, s51\nv_mov_b32 v33, 0")
    k.e("s_mov_b64 exec, 1")
    k.e("buffer_atomic_add v32, v33, s[56:59], s42 offen sc0")
    k.e("s_waitcnt vmcnt(0)")
    k.e("ds_write_b32 v33, v32 offset:65536-4")
    k.e("s_mov_b64 exec, -1")
    k.e("s_waitcnt lgkmcnt(0)")
    k.e("P3_wait:\ns_barrier")
    k.e("v_mov_b32 v33, 0\nds_read_b32 v32, v33 offset:65536-4\ns_waitcnt lgkmcnt(0)")
    k.e("v_readfirstlane_b32 s51, v32\ns_lshr_b32 s51, s51, s43\ns_and_b32 s51, s51, 0xffff")
    k.stamp(4)
    k.e("s_cmp_eq_u32 s51, 0\ns_cbranch_scc1 P3_fin")
    for n in range(8):
        k.e(f"buffer_load_dwordx4 {v(224+n*4,4)}, v11, s[12:15], s{61 if n < 4 else 63} offen offset:{(n%4)*1024} sc1")
    k.e("v_and_b32 v34, 15, v0\nv_lshlrev_b32 v34, 11, v34\nv_add_u32 v35, v34, v15\nv_lshl_add_u32 v34, v14, 4, v34")
    k.e("s_lshl_b32 s51, s37, 17\ns_add_u32 s50, s50, s51")
    for tt in range(4):
        k.e(f"s_add_u32 s{68+tt}, s50, {tt*16*2048}")
    for m in range(2):
        for tt in range(4):
            for b in range(2):
                k.e(f"buffer_load_dwordx2 {v(64+(m*4+tt)*4+2*b,2)}, v35, s[8:11], s{68+tt} offen offset:{(2*m+b)*32}")
    k.e("s_waitcnt vmcnt(0)")
    for n in range(8):
        m, tt = divmod(n, 4)
        for d in range(4):
            A_, B_, X_ = 192+n*4+d, 224+n*4+d, 64+n*4+d
            k.e(f"v_lshlrev_b32 v40, 16, v{A_}\nv_and_b32 v41, 0xffff0000, v{A_}\nv_lshlrev_b32 v42, 16, v{B_}\nv_and_b32 v43, 0xffff0000, v{B_}")
            k.e("v_pk_mul_f32 v[40:41], v[40:41], v[42:43]")
            k.e(f"v_lshlrev_b32 v44, 16, v{X_}\nv_and_b32 v45, 0xffff0000, v{X_}")
            k.e("v_cvt_pk_bf16_f32 v40, v40, v41\nv_and_b32 v41, 0xffff0000, v40\nv_lshlrev_b32 v40, 16, v40")
            k.e("v_pk_add_f32 v[40:41], v[40:41], v[44:45]")
            k.e(f"v_cvt_pk_bf16_f32 v{A_}, v40, v41")
        b = 192 + n*4
        k.e("s_nop 1")
        k.e(f"v_permlane32_swap_b32 v{b}, v{b+2}\nv_permlane32_swap_b32 v{b+1}, v{b+3}\ns_nop 0")
        k.e(f"v_permlane16_swap_b32 v{b}, v{b+2}\nv_permlane16_swap_b32 v{b+1}, v{b+3}")
        k.e(f"buffer_store_dwordx4 {v(b,4)}, v34, s[52:55], s{68+tt} offen offset:{m*64}")
    k.e("P3_fin:")
    if STAMPS: k.e("s_waitcnt vmcnt(0)")
    k.stamp(5); k.stamp_out(2, 6, 12, 22, "P3_so")
    k.e("P3_end:\ns_endpgm")
    return k, descriptor("p3_kernel", 512, 256, 100)

def main():
    out = sys.argv[1] if len(sys.argv) > 1 and sys.argv[1].endswith(".s") else f"cdna_kernels/{NAME}.s"
    ks = [gen_p1(), gen_p2(), gen_p3()]
    for k, _ in ks:
        for p in check_hazards(k.L): print("HAZARD", p)
    txt = "; generated by dev/gen.py\n"
    txt += "; @launch kernel=prep_kernel grid=(256,1,1) block=(512,1,1) lds=1024\n"
    txt += "; @launch kernel=p2_kernel grid=(256,1,1) block=(256,1,1) lds=131072\n"
    txt += "; @launch kernel=p3_kernel grid=(256,1,1) block=(256,1,1) lds=131072\n"
    txt += '.amdgcn_target "amdgcn-amd-amdhsa--gfx950"\n.text\n'
    for k, _ in ks: txt += k.text()
    txt += '.section .rodata,"a"\n'
    for _, d in ks: txt += ".p2align 6\n" + d
    open(out, "w").write(txt)
    print("wrote", out, len(txt), "bytes")
main()
```

```python
from asmlib import parse, need, v, a, s, check_hazards

class K:
    def __init__(self):
        self.L = []; self.P = []
        self.vm = []; self.lg = []
        self.nops = 0; self.region = ""; self.nopstat = {}
    def hazard(self, d):
        dist = 0; miss = 0
        for p in reversed(self.P[-16:]):
            if dist >= 14: break
            n = need(p, d)
            if n > dist: miss = max(miss, n - dist)
            dist += p["states"]
        return miss
    def _one(self, line):
        d = parse(line)
        if d is None:
            self.L.append(line); return
        m = self.hazard(d)
        if m:
            self.L.append(f"s_nop {m-1}"); self.P.append(parse(f"s_nop {m-1}"))
            self.nopstat[self.region] = self.nopstat.get(self.region, 0) + m
        self.L.append(line); self.P.append(d)
        if d["op"] in ("s_endpgm", "s_branch"): self.P = []
        if len(self.P) > 64: self.P = self.P[-32:]
    def e(self, txt):
        for line in txt.split("\n"):
            line = line.strip()
            if line: self._one(line)
    def vmem(self, txt, tag=None):
        self._one(txt); self.vm.append(tag)
    def lds(self, txt, tag=None):
        self._one(txt); self.lg.append(tag)
    def _after(self, lst, tag):
        for i in range(len(lst)-1, -1, -1):
            if lst[i] == tag: return len(lst)-1-i
        return None
    def wait_vm(self, tags):
        ns = [self._after(self.vm, t) for t in tags]
        assert all(n is not None for n in ns), tags
        n = min(min(ns), 63)
        self.e(f"s_waitcnt vmcnt({n})"); return n
    def wait_lg(self, tag):
        n = self._after(self.lg, tag); assert n is not None, tag
        self.e(f"s_waitcnt lgkmcnt({min(n, 15)})")
    def text(self):
        return "\n".join(self.L) + "\n"

class Task:
    __slots__ = ("txt", "cost", "kind", "tag", "after", "mark", "d", "fn")
    def __init__(self, txt=None, cost=None, kind=None, tag=None, after=0, mark=None, fn=None):
        self.txt = txt; self.tag = tag; self.after = after; self.mark = mark; self.fn = fn
        self.d = parse(txt) if txt else None
        if kind is None:
            kind = "bar" if fn else self.d["kind"]
        self.kind = kind
        if cost is None:
            cost = 2 if (txt and txt.split()[0] in ("v_exp_f32", "v_rcp_f32", "v_sqrt_f32", "v_rsq_f32", "v_log_f32")) else 1
        self.cost = cost

def conflict(x, y):
    return bool((x["w"] & (y["r"] | y["w"])) or (y["w"] & x["r"]))

class Sched:
    def __init__(self, k, frags, aring, look=7, wstep=2):
        self.k = k; self.frags = frags; self.aring = aring; self.look = look; self.wstep = wstep
        self.nread = 0; self.f = 0; self.waited = -1; self.nm = 0
        self.q = {"x": [], "d": [], "p": []}
        self.carry = []; self.tasks = []
        self.over = {}
        seen = set()
        for fr in frags:
            fr["first"] = fr["stage"] not in seen; seen.add(fr["stage"])
    def areg(self, f): return self.aring + (f % 8)*4
    def admit(self, nf):
        fr = self.frags[nf]; k = self.k; n = 0
        if fr["first"] and not fr.get("admitted"):
            st = fr["stage"]
            assert not any(it[2] == ("dma", st) for it in self.q["d"]), st
            assert not any(t.tag in fr.get("also", []) for t in self.tasks), (st, len(self.tasks))
            k.wait_vm([("dma", st)] + fr.get("also", [])); k.e("s_barrier"); n = 2
            if fr.get("after_bar"): fr["after_bar"]()
        return n
    def prime(self, upto):
        while self.nread < upto:
            self.admit(self.nread)
            for r in self.frags[self.nread]["reads"](self.areg(self.nread)): self.k.lds(r, ("f", self.nread))
            self.nread += 1
    def emit_task(self, t):
        k = self.k
        if t.fn: t.fn()
        elif t.kind == "vmem": k.vmem(t.txt, t.tag)
        else: k.e(t.txt)
    def pick(self, cap, vm_ok, prefer2):
        best = None
        for i, t in enumerate(self.tasks[:48]):
            if t.kind == "bar":
                if i == 0 and t.after <= self.nm and t.cost <= cap: best = i
                break
            if t.after > self.nm or t.cost > cap: continue
            if t.kind == "vmem" and (not vm_ok or any(u.kind == "vmem" for u in self.tasks[:i])): continue
            if any(conflict(u.d, t.d) for u in self.tasks[:i]): continue
            if self.k.hazard(t.d): continue
            if prefer2 and t.cost == 2: return i
            if best is None:
                best = i
                if not prefer2: return i
        return best
    def flush(self, mark=None):
        n = 0
        while self.tasks and (mark is None or any(t.mark == mark for t in self.tasks)):
            i = self.pick(2, True, False)
            if i is None: i = 0
            t = self.tasks.pop(i); self.emit_task(t); n += t.cost
        self.over[self.k.region] = self.over.get(self.k.region, 0) + n
    def flush_side(self):
        for t in self.carry: self.k.e(t)
        self.carry = []
        for q in self.q.values():
            emit_now(self.k, q); del q[:]
    def group(self, mf, frag=True, pre=None, vq=None, gv=2, rdsplit=True, nextpre=0):
        k = self.k; rd = []; f = self.f
        if frag and self.nread < len(self.frags) and self.nread <= f + self.look:
            self.admit(self.nread)
            rd = self.frags[self.nread]["reads"](self.areg(self.nread)); rdtag = ("f", self.nread); self.nread += 1
        if pre: pre()
        if frag and self.waited < f:
            tgt = min(f + self.wstep - 1, self.nread - 1 - (1 if rd else 0), len(self.frags) - 1)
            tgt = max(tgt, f)
            k.wait_lg(("f", tgt)); self.waited = tgt
        nf = f + 1 if frag else f
        tail = nextpre + (1 if self.waited < nf < len(self.frags) else 0)
        if self.nread < len(self.frags) and self.frags[self.nread]["first"] and not self.frags[self.nread].get("admitted"): tail += 2
        item = None
        for qn in ([vq] if isinstance(vq, str) else (vq or [])):
            if self.q[qn]:
                item = self.q[qn].pop(0); break
        vm_ok = True
        ms = mf(self.areg(f) if frag else None)
        for i, m in enumerate(ms):
            k.e(m); self.nm += 1
            cap = 2
            if i == len(ms) - 1: cap -= tail
            if rd:
                k.lds(rd.pop(0), rdtag); cap -= 1
                if rd and not rdsplit:
                    k.lds(rd.pop(0), rdtag); cap -= 1
            if item and i == gv - 1 and item[0]:
                k.e(item[0]); cap -= 1
            if item and i == gv:
                for t in self.carry: k.e(t); cap -= 1
                self.carry = []
                k.vmem(item[1], item[2]); cap -= 1
                if item[3]: self.carry.extend([item[3]] if isinstance(item[3], str) else item[3])
            while cap > 0:
                j = self.pick(cap, vm_ok and not (item and abs(i - gv) <= 1), cap == 2)
                if self.carry and not (j is not None and self.tasks[j].cost == 2):
                    k.e(self.carry.pop(0)); cap -= 1
                elif j is not None:
                    t = self.tasks.pop(j); self.emit_task(t); cap -= t.cost
                    if t.kind == "vmem": vm_ok = False
                else: break
            if cap < 0: self.over[k.region] = self.over.get(k.region, 0) - cap
        if frag: self.f += 1

def emit_now(k, items):
    for pre, txt, tag, post in items:
        if pre: k.e(pre)
        k.vmem(txt, tag)
        if post: k.e(post if isinstance(post, str) else "\n".join(post))
```

```python
import sys, struct, math
from asm2 import K, Task, Sched, emit_now, v, a, s, check_hazards

NAME = "recurrent_scan__sliding_block_cached__dense_activation_gelu__prompt"
MB = 1 << 20
XN_OFF, FL_OFF, O_OFF, H_OFF, PF_OFF, PS_OFF, STAMP_OFF = 0, 4*MB, 8*MB, 24*MB, 40*MB, 56*MB, 80*MB
WS_BYTES = 256*MB
def opt(name, default):
    return type(default)(sys.argv[sys.argv.index(name)+1]) if name in sys.argv else default
STAMPS = '--stamps' in sys.argv
XD = opt('--xd', 4)
AD = opt('--ad', 5)
TOUCH = '--notouch' not in sys.argv
NT = '' if '--nont' in sys.argv else ' nt'
SPIN_LIMIT = 1 << 18
def f32(x): return "0x%08x" % struct.unpack("<I", struct.pack("<f", x))[0]
MFMA = "v_mfma_f32_16x16x32_bf16"
LDS_SCR = 131072

WQ, W1, WS, B1, KC, VC, WO, W2, XS, OUT, DBG, B2 = 4, 8, 12, 16, 20, 24, 28, 32, 36, 40, 44, 48
WAVE, RB, J, R, FB, TOK64, M0W, M0KV, M0P, SKV, SW3, SX, NONCE, FLOWN, SWQ, SW1, ST1, ST2 = range(52, 70)
T0, T1, T2, T3, T4, T5 = range(70, 76)
STB = 76
def srd(n): return f"s[{n}:{n+3}]"
VP3 = 1
VKV = 9
VL16, VFP8, VFP4 = 13, 14, 15
WV, WK = 16, 32
VT = 40
VFST, VFVAL, VPOLL, VQ8 = 60, 61, 62, 63
G1D, G1Q, G1F, VTCH, VDUM = 64, 72, 80, 94, 95
QF, FACC, SB, NEGM, ONES, LACC = 64, 128, 128, 192, 208, 212
F2A = 64
SOWN, XRES = 192, 224
QACC, AR, XR = 0, 128, 160

k = K()
nstamp = [0]
SSET = opt('--sset', 'main')
def stamp(which='main'):
    if STAMPS and (which == SSET or which == 'all') and nstamp[0] < 13:
        n = nstamp[0]; nstamp[0] += 1
        k.e(f"{'s_memtime' if '--cyc' in sys.argv else 's_memrealtime'} s[{STB+2*n}:{STB+2*n+1}]")
spins = []
def poll_load(voff, soff): return f"buffer_load_dword v{VPOLL}, v{voff}, {srd(WS)}, s{soff} offen sc1"
def poll_check(name, voff, soff, sref, phase):
    spins.append((name, voff, soff, sref, phase))
    return [f"v_subrev_u32 v{VPOLL}, s{sref}, v{VPOLL}", f"v_cmp_le_u32 vcc, {16-phase}, v{VPOLL}", f"s_cbranch_vccnz SPIN_{name}\nBACK_{name}:"]
def emit_spins():
    for name, voff, soff, sref, phase in spins:
        k.e(f"SPIN_{name}:\ns_mov_b32 s3, {SPIN_LIMIT}\nSPINL_{name}:")
        k.e(poll_load(voff, soff)); k.e("s_waitcnt vmcnt(0)")
        k.e(f"v_subrev_u32 v{VPOLL}, s{sref}, v{VPOLL}\nv_cmp_le_u32 vcc, {16-phase}, v{VPOLL}\ns_cbranch_vccz BACK_{name}")
        k.e(f"s_sub_u32 s3, s3, 1\ns_cmp_lg_u32 s3, 0\ns_cbranch_scc1 SPINL_{name}\ns_branch BACK_{name}")
FLAG_STORE = f"buffer_store_dword v{VFVAL}, v{VFST}, {srd(WS)}, s{FLOWN} offen sc1"

def reduce4(x, t, op):
    k.e(f"v_mov_b32 v{t}, v{x}\nv_permlane32_swap_b32 v{x}, v{t}\n{op} v{x}, v{x}, v{t}")
    k.e(f"v_mov_b32 v{t}, v{x}\nv_permlane16_swap_b32 v{x}, v{t}\n{op} v{x}, v{x}, v{t}")
def round_bf16(d, x):
    k.e(f"v_cvt_pk_bf16_f32 v{d}, v{x}, v{x}\nv_and_b32 v{d}, 0xffff0000, v{d}")
def mk_srd(d, nbytes):
    k.e(f"s_and_b32 s{d+1}, s{d+1}, 0xffff\ns_mov_b32 s{d+2}, {nbytes}\ns_mov_b32 s{d+3}, 0x20000")

def dma_items(st):
    it = []; slot = (st % 4)*32768
    if st < 16:
        for m in range(2):
            for i in range(4):
                it.append((f"s_add_u32 m0, s{M0W}, {slot + m*16384}" if i == 0 else None,
                           f"buffer_load_dwordx4 v{G1D+4*m+i}, {srd(W1 if m else WQ)}, s{SWQ+m} offen offset:{i*1024}{NT} lds", ("dma", st),
                           f"s_add_u32 s{SWQ+m}, s{SWQ+m}, {64*(7168 if m else 8192)}" if i == 3 else None))
    elif st < 24:
        for bl in range(4):
            b = (st - 16)*4 + bl
            isk = b == 0 or (b % 2 == 1 and b < 31)
            for i in range(2):
                post = None
                if i == 1 and (isk or b == 30): post = f"s_add_u32 s{SKV}, s{SKV}, 8192"
                it.append((f"s_add_u32 m0, s{M0KV}, {slot + bl*8192}" if i == 0 else None,
                           f"buffer_load_dwordx4 v{VKV + (0 if isk else 2) + i}, {srd(KC if isk else VC)}, s{SKV} offen offset:{i*1024} lds", ("dma", st), post))
    elif st < 39:
        for i in range(8):
            post = None
            if i == 7: post = f"s_add_u32 s{SW3}, s{SW3}, {128*2048}" if st != 30 else f"s_lshl_b32 s{SW3}, s{R}, 21"
            it.append((f"s_add_u32 m0, s{M0P}, {slot + (i//4)*4096}" if i % 4 == 0 else None,
                       f"buffer_load_dwordx4 v{VP3+i}, {srd(W2 if st < 31 else WO)}, s{SW3} offen offset:{(i%4)*1024} lds", ("dma", st), post))
    return it
def xreg(kap, tt): return a(XR + (kap % 6)*16 + tt*4, 4)
def x_items(kap):
    if kap >= 32: return []
    return [(None, f"buffer_load_dwordx4 {xreg(kap, tt)}, v{VL16}, {srd(WS)}, s{SX} offen offset:{tt*1024} sc1", ("x", kap),
             f"s_add_u32 s{SX}, s{SX}, 4096" if tt == 3 else None) for tt in range(4)]
SXO = 4
def actreg(n, tt): return a(XR + (n % 6)*16 + tt*4, 4) if n < 54 else v(64 + (n-54)*16 + tt*4, 4)
def act_items(n):
    if n >= 60: return []
    post = f"s_add_u32 s{SX}, s{SX}, 4096" if n != 27 else f"s_mov_b32 s{SX}, s{SXO}"
    return [(None, f"buffer_load_dwordx4 {actreg(n, tt)}, v{VL16}, {srd(WS)}, s{SX} offen offset:{tt*1024} sc1", ("act", n), post if tt == 3 else None) for tt in range(4)]

def start():
    k.region = "start"
    k.e(f".globl {NAME}_kernel\n.p2align 8\n.type {NAME}_kernel,@function\n{NAME}_kernel:")
    k.e("s_cmp_lt_u32 s2, 256\ns_cbranch_scc1 L_go\ns_endpgm\nL_go:")
    stamp()
    for d, off in ((XS, 0), (WQ, 24), (W1, 48), (WS, 96), (DBG, 88)):
        k.e(f"s_load_dwordx2 s[{d}:{d+1}], s[0:1], {off}")
    k.e(f"v_lshrrev_b32 v1, 6, v0\nv_and_b32 v0, 63, v0\nv_readfirstlane_b32 s{WAVE}, v1")
    k.e(f"s_and_b32 s{T0}, s2, 7\ns_lshr_b32 s{T1}, s2, 3")
    k.e(f"s_and_b32 s{RB}, s{T0}, 1\ns_lshl_b32 s{RB}, s{RB}, 2\ns_and_b32 s{T2}, s{T1}, 3\ns_add_u32 s{RB}, s{RB}, s{T2}")
    k.e(f"s_lshr_b32 s{R}, s{T0}, 1\ns_lshr_b32 s{FB}, s{T1}, 2\ns_lshl_b32 s{J}, s{R}, 3\ns_add_u32 s{J}, s{J}, s{FB}")
    k.e(f"s_lshl_b32 s{TOK64}, s{RB}, 2\ns_add_u32 s{TOK64}, s{TOK64}, s{WAVE}")
    k.e(f"s_lshl_b32 s{M0W}, s{WAVE}, 12\ns_lshl_b32 s{M0KV}, s{WAVE}, 11\ns_lshl_b32 s{M0P}, s{WAVE}, 13")
    k.e(f"v_and_b32 v40, 7, v0\nv_lshrrev_b32 v41, 3, v0\nv_lshlrev_b32 v42, 11, v40\nv_lshl_add_u32 v42, v41, 4, v42")
    k.e(f"s_lshl_b32 s{T0}, s{RB}, 19\ns_lshl_b32 s{T1}, s{J}, 14\ns_add_u32 s{T0}, s{T0}, s{T1}\ns_lshl_b32 s{T1}, s{WAVE}, 9\ns_add_u32 s{T0}, s{T0}, s{T1}")
    k.e("s_waitcnt lgkmcnt(0)")
    mk_srd(XS, 4*MB)
    RAW, X = 128, 144
    for i in range(4): k.vmem(f"buffer_load_dwordx4 {v(RAW+4*i,4)}, v42, {srd(XS)}, s{T0} offen offset:{128*i}", ("ln", i))
    for d, off in ((B1, 56), (KC, 8), (VC, 16), (WO, 32), (W2, 64), (OUT, 80), (B2, 72)):
        k.e(f"s_load_dwordx2 s[{d}:{d+1}], s[0:1], {off}")
    mk_srd(WQ, 1024*8192); mk_srd(W1, 1024*7168); mk_srd(WS, WS_BYTES); mk_srd(DBG, 256)
    k.e(f"v_lshrrev_b32 v44, 4, v0\nv_and_b32 v45, 15, v0")
    k.e(f"s_lshl_b32 s{T1}, s{WAVE}, 4\nv_add_u32 v46, s{T1}, v44")
    k.e(f"s_lshl_b32 s{T2}, s{J}, 8\ns_mul_i32 s{T3}, s{J}, 224\ns_movk_i32 s{T4}, 7168\ns_and_b32 s{T5}, s{J}, 1")
    for h in range(2):
        k.e(f"v_or_b32 v47, {4*h}, v44\nv_lshlrev_b32 v47, 1, v47\nv_xor_b32 v47, v45, v47")
        k.e(f"v_lshlrev_b32 v48, 4, v47\nv_lshl_add_u32 v48, v46, 13, v48\nv_add_u32 v48, s{T2}, v48")
        for i in (2*h, 2*h+1): k.e(f"v_add_u32 v{G1D+i}, {i*(4*8192-1024)}, v48")
        k.e(f"v_lshrrev_b32 v49, 1, v47\nv_add_u32 v50, s{T5}, v49")
        k.e("v_cmp_ne_u32 vcc, 7, v50\nv_cndmask_b32 v50, 0, v50, vcc")
        k.e("v_and_b32 v51, 1, v47\nv_lshlrev_b32 v51, 4, v51\nv_lshl_add_u32 v50, v50, 5, v51")
        k.e(f"v_mul_lo_u32 v51, v46, s{T4}\nv_add3_u32 v50, v50, v51, s{T3}")
        k.e("v_mov_b32 v51, 0x40000000\nv_cmp_ne_u32 vcc, 7, v49\nv_cndmask_b32 v50, v51, v50, vcc")
        for i in (2*h, 2*h+1): k.e(f"v_add_u32 v{G1D+4+i}, {i*(4*7168-1024)}, v50")
    k.e(f"s_mov_b32 s{SWQ}, 0\ns_mov_b32 s{SW1}, 0")
    k.e(f"s_lshl_b32 s{FLOWN}, s{RB}, 12\ns_add_u32 s{FLOWN}, s{FLOWN}, {FL_OFF}")
    k.e(f"s_or_b32 s{T1}, s{J}, s{WAVE}\ns_cmp_lg_u32 s{T1}, 0\ns_cbranch_scc1 L_nolead")
    k.e(f"v_and_b32 v52, 31, v0\nv_lshlrev_b32 v52, 7, v52")
    k.e(f"buffer_load_dword v53, v52, {srd(WS)}, s{FLOWN} offen sc1\ns_waitcnt vmcnt(0)")
    k.e(f"v_readfirstlane_b32 s{T1}, v53")
    k.e(f"L_lead:\ns_add_u32 s{T1}, s{T1}, 16\ns_cmp_eq_u32 s{T1}, 0\ns_cbranch_scc1 L_lead")
    k.e(f"v_subrev_u32 v54, s{T1}, v53\nv_cmp_gt_u32 vcc, 16, v54\ns_cbranch_vccnz L_lead")
    k.e(f"v_mov_b32 v54, s{T1}\nv_mov_b32 v55, 0\ns_lshl_b32 s{T1}, s{RB}, 5")
    k.e(f"buffer_store_dword v54, v55, {srd(DBG)}, s{T1} offen sc1")
    k.e("L_nolead:")
    emit_now(k, dma_items(0))
    k.e("s_waitcnt lgkmcnt(0)")
    mk_srd(B1, 7168); mk_srd(KC, 2*MB); mk_srd(VC, 2*MB); mk_srd(WO, 4096*2048); mk_srd(W2, 3584*2048); mk_srd(OUT, 4*MB); mk_srd(B2, 2048)
    k.e(f"v_lshlrev_b32 v{VL16}, 4, v0\nv_lshlrev_b32 v{VFP8}, 7, v40\nv_and_b32 v{VFP4}, 3, v0\nv_lshlrev_b32 v{VFP4}, 10, v{VFP4}")
    k.e(f"s_lshl_b32 s{T1}, s{WAVE}, 2\ns_add_u32 s{T1}, s{T1}, {LDS_SCR}\nv_lshlrev_b32 v43, 4, v40\nv_add_u32 v52, s{T1}, v43\nv_add_u32 v43, {LDS_SCR}, v43")
    for i in range(4):
        k.wait_vm([("ln", i)])
        for d in range(4):
            r = RAW + 4*i + d; o = X + 8*i + 2*d
            k.e(f"v_lshlrev_b32 v{o}, 16, v{r}\nv_and_b32 v{o+1}, 0xffff0000, v{r}")
    A_, B_, MEAN = 56, 57, 58
    k.e(f"v_add_f32 v{A_}, v{X}, v{X+1}\nv_add_f32 v{B_}, v{X+2}, v{X+3}")
    for i in range(4, 32, 2): k.e(f"v_add_f32 v{A_}, v{A_}, v{X+i}\nv_add_f32 v{B_}, v{B_}, v{X+i+1}")
    def allsum(off):
        k.e(f"v_add_f32 v{A_}, v{A_}, v{B_}")
        k.e(f"v_add_f32_dpp v{A_}, v{A_}, v{A_} row_ror:8 row_mask:0xf bank_mask:0xf")
        reduce4(A_, B_, "v_add_f32")
        k.e(f"ds_write_b32 v52, v{A_} offset:{off}\ns_waitcnt lgkmcnt(0)\ns_barrier")
        k.e(f"ds_read_b128 v[44:47], v43 offset:{off}\ns_waitcnt lgkmcnt(0)")
        k.e(f"v_add_f32 v44, v44, v45\nv_add_f32 v46, v46, v47\nv_add_f32 v{A_}, v44, v46\nv_mul_f32 v{A_}, {f32(1/1024)}, v{A_}")
    allsum(0)
    k.e(f"v_mov_b32 v{MEAN}, v{A_}\nv_mov_b32 v{A_}, 0\nv_mov_b32 v{B_}, 0")
    for i in range(0, 32, 2):
        k.e(f"v_sub_f32 v48, v{X+i}, v{MEAN}\nv_sub_f32 v49, v{X+i+1}, v{MEAN}\nv_fmac_f32 v{A_}, v48, v48\nv_fmac_f32 v{B_}, v49, v49")
    allsum(128)
    round_bf16(MEAN, MEAN); round_bf16(A_, A_)
    k.e(f"v_add_f32 v{A_}, {f32(1e-5)}, v{A_}"); round_bf16(A_, A_)
    k.e(f"v_sqrt_f32 v{A_}, v{A_}"); round_bf16(A_, A_)
    k.e(f"v_rcp_f32 v{A_}, v{A_}")
    k.e(f"s_lshl_b32 s{T0}, s{RB}, 2\ns_add_u32 s{T0}, s{T0}, s{R}\ns_lshl_b32 s{T0}, s{T0}, 17\ns_lshl_b32 s{T1}, s{WAVE}, 15\ns_add_u32 s{T0}, s{T0}, s{T1}")
    k.e(f"s_bfe_u32 s{T1}, s{J}, 0x20001\ns_lshl_b32 s{T1}, s{T1}, 10\ns_add_u32 s{T0}, s{T0}, s{T1}\ns_lshl_b32 s{T1}, s{T5}, 7\ns_add_u32 s{T0}, s{T0}, s{T1}")
    k.e("v_lshrrev_b32 v50, 2, v41\nv_and_b32 v51, 3, v41\nv_lshlrev_b32 v50, 12, v50\nv_lshl_add_u32 v50, v51, 8, v50\nv_lshl_add_u32 v50, v40, 4, v50")
    for i in range(4):
        for d in range(4):
            o = X + 8*i + 2*d; r = RAW + 4*i + d
            k.e(f"v_sub_f32 v48, v{o}, v{MEAN}\nv_sub_f32 v49, v{o+1}, v{MEAN}\nv_cvt_pk_bf16_f32 v48, v48, v49")
            k.e(f"v_and_b32 v49, 0xffff0000, v48\nv_lshlrev_b32 v48, 16, v48\nv_mul_f32 v48, v48, v{A_}\nv_mul_f32 v49, v49, v{A_}")
            k.e(f"v_cvt_pk_bf16_f32 v{r}, v48, v49")
        k.vmem(f"buffer_store_dwordx4 {v(RAW+4*i,4)}, v50, {srd(WS)}, s{T0} offen sc1", "lnst")
        if i < 3: k.e(f"s_add_u32 s{T0}, s{T0}, 8192")
    stamp()
    k.e(f"v_mov_b32 v55, 0\ns_lshl_b32 s{T4}, s{RB}, 5")
    NLOAD = f"buffer_load_dword v54, v55, {srd(DBG)}, s{T4} offen sc1"
    k.vmem(NLOAD, "nonce")
    BI = 112
    k.e(f"v_lshrrev_b32 v44, 4, v0\nv_lshlrev_b32 v{VQ8}, 3, v44\nv_add_u32 v46, s{T3}, v{VQ8}")
    k.e(f"s_lshl_b32 s{T0}, s{T5}, 5\ns_xor_b32 s{T1}, s{T5}, 1\ns_mul_i32 s{T1}, s{T1}, 192")
    for i in range(6): k.vmem(f"buffer_load_dwordx2 {v(BI+2*i,2)}, v46, {srd(B1)}, s{T0} offen offset:{32*i}", "bias")
    k.vmem(f"buffer_load_dwordx2 {v(BI+12,2)}, v46, {srd(B1)}, s{T1} offen", "bias")
    emit_now(k, dma_items(1))
    k.e("v_bfe_u32 v45, v0, 2, 2\nv_lshl_add_u32 v46, v44, 3, v45\nv_lshlrev_b32 v46, 8, v46\nv_and_b32 v47, 3, v0")
    k.e("v_and_b32 v48, 1, v44\nv_lshl_or_b32 v48, v48, 2, v45")
    k.e("v_lshl_add_u32 v49, v47, 3, v46\nv_lshlrev_b32 v51, 1, v48\nv_xor_b32 v51, v51, v47")
    for t in range(7): k.e(f"v_xor_b32 v50, {t}, v48\nv_lshl_add_u32 v{G1F+t}, v50, 5, v49\nv_add_u32 v{G1F+7+t}, 0x10000, v{G1F+t}")
    for t in range(4): k.e(f"v_xor_b32 v50, {4*t}, v51\nv_lshl_add_u32 v{G1Q+t}, v50, 4, v46\nv_add_u32 v{G1Q+4+t}, 0x10000, v{G1Q+t}")
    k.e("v_and_b32 v45, 15, v0\nv_lshlrev_b32 v46, 8, v45\nv_lshlrev_b32 v48, 1, v40\nv_xor_b32 v48, v48, v44")
    for t in range(4): k.e(f"v_xor_b32 v50, {4*t}, v48\nv_lshl_add_u32 v{WK+t}, v50, 4, v46\nv_add_u32 v{WK+4+t}, 0x10000, v{WK+t}")
    k.e("v_lshrrev_b32 v48, 2, v0\nv_lshlrev_b32 v46, 8, v48\nv_lshl_add_u32 v46, v47, 3, v46\nv_and_b32 v48, 7, v48")
    k.e(f"s_lshl_b32 s{T0}, s{R}, 1\ns_add_u32 s{T0}, s{T0}, 2")
    for t in range(8):
        k.e(f"s_add_u32 s{T1}, s{T0}, {t}\ns_and_b32 s{T1}, s{T1}, 7")
        k.e(f"v_xor_b32 v50, s{T1}, v48\nv_lshl_add_u32 v{WV+t}, v50, 5, v46\nv_add_u32 v{WV+8+t}, 0x10000, v{WV+t}")
    k.e(f"s_lshl_b32 s{T0}, s{R}, 19\ns_add_u32 s{T0}, s{T0}, s{M0KV}\ns_add_u32 s{T0}, s{T0}, {1536*256}")
    k.e(f"s_lshl_b32 s{T1}, s{WAVE}, 16\ns_lshl_b32 s{T2}, s{FB}, 8\ns_add_u32 s{T1}, s{T1}, s{T2}")
    for h in range(2):
        k.e(f"v_or_b32 v47, {4*h}, v44\nv_lshlrev_b32 v47, 1, v47\nv_xor_b32 v47, v45, v47\nv_lshlrev_b32 v47, 4, v47")
        k.e(f"v_lshl_add_u32 v48, v44, 8, v47\nv_add_u32 v{VKV+h}, s{T0}, v48\nv_subrev_u32 v{VKV+2+h}, 16384, v{VKV+h}")
        k.e(f"v_lshl_add_u32 v48, v44, 11, v47\nv_add_u32 v48, s{T1}, v48")
        for i in range(h, 8, 2): k.e(f"v_add_u32 v{VP3+i}, {i*8192 - (i%4)*1024}, v48")
    k.e(f"s_mov_b32 s{SKV}, 0\ns_mul_i32 s{SW3}, s{R}, {896*2048}")
    k.e(f"s_lshl_b32 s{SX}, s{TOK64}, 17")
    k.e(f"s_lshl_b32 s{ST1}, s2, 2\ns_add_u32 s{ST1}, s{ST1}, s{WAVE}\ns_mul_i32 s{ST2}, s{ST1}, 7168\ns_lshl_b32 s{ST1}, s{ST1}, 13\nv_lshlrev_b32 v{VTCH}, 3, v0")
    k.e(f"v_or_b32 v47, s{WAVE}, v0\nv_cmp_eq_u32 vcc, 0, v47\nv_bfrev_b32 v48, 1\nv_cndmask_b32 v{VFST}, v48, 0, vcc")
    k.e(f"s_lshl_b32 s{T0}, s{WAVE}, 10\ns_add_u32 s{T0}, s{T0}, s{FLOWN}")
    k.e(f"s_lshl_b32 s{T1}, s{J}, 7\ns_add_u32 s{FLOWN}, s{FLOWN}, s{T1}")
    k.wait_vm(["lnst", "nonce"])
    k.e(f"s_mov_b32 s3, {SPIN_LIMIT}")
    k.e(f"L_nonce:\nv_readfirstlane_b32 s{NONCE}, v54\ns_cmp_lg_u32 s{NONCE}, 0\ns_cbranch_scc1 L_nonce_ok")
    k.e(f"{NLOAD}\ns_waitcnt vmcnt(0)\ns_sub_u32 s3, s3, 1\ns_cmp_lg_u32 s3, 0\ns_cbranch_scc1 L_nonce")
    k.e("L_nonce_ok:\ns_barrier")
    k.e(f"s_add_u32 s{T1}, s{NONCE}, 1\nv_mov_b32 v{VFVAL}, s{T1}")
    k.vmem(FLAG_STORE, "flag")
    stamp()
    k.vmem(poll_load(VFP8, T0), ("poll", "xn"))
    emit_now(k, dma_items(2))
    k.wait_vm(["bias"])
    for ft in range(7):
        b = FACC + ft*16
        k.e(f"v_lshlrev_b32 v{b}, 16, v{BI+2*ft}\nv_and_b32 v{b+1}, 0xffff0000, v{BI+2*ft}")
        k.e(f"v_lshlrev_b32 v{b+2}, 16, v{BI+1+2*ft}\nv_and_b32 v{b+3}, 0xffff0000, v{BI+1+2*ft}")
        for tt in range(1, 4):
            for r in range(4): k.e(f"v_mov_b32 v{b+4*tt+r}, v{b+r}")
    k.wait_vm([("poll", "xn")])
    for t in poll_check("xn", VFP8, T0, T1, 1): k.e(t)
    stamp()
    for kap in range(XD): emit_now(k, x_items(kap))

def build_frags():
    frags = []
    def add(st, reads): frags.append(dict(stage=st, reads=reads))
    for st in range(16):
        w = 1 if (st % 4) >= 2 else 0
        for ks in range(2):
            for ft in range(15):
                if ft < 8: reg, off = G1Q + 4*w + ft//2, (st % 2)*32768 + ks*8192 + (ft % 2)*8
                else: reg, off = G1F + 7*w + ft - 8, (st % 2)*32768 + 16384 + ks*8192
                add(st, lambda r, reg=reg, off=off: [f"ds_read_b64_tr_b16 {a(r,2)}, v{reg} offset:{off}", f"ds_read_b64_tr_b16 {a(r+2,2)}, v{reg} offset:{off+1024}"])
    def trw(st, base, t):
        w = 1 if (st % 4) >= 2 else 0; off = (st % 2)*32768 + base
        add(st, lambda r, reg=WV + 8*w + t, off=off: [f"ds_read_b64_tr_b16 {a(r,2)}, v{reg} offset:{off}", f"ds_read_b64_tr_b16 {a(r+2,2)}, v{reg} offset:{off+4096}"])
    for b in range(32):
        st = 16 + b//4; w = 1 if (st % 4) >= 2 else 0
        isk = b == 0 or (b % 2 == 1 and b < 31)
        for n in range(8):
            if isk:
                kt, ks = divmod(n, 4)
                add(st, lambda r, reg=WK + 4*w + ks, off=(st % 2)*32768 + (b % 4)*8192 + kt*4096: [f"ds_read_b128 {a(r,4)}, v{reg} offset:{off}"])
            else: trw(st, (b % 4)*8192, n)
    order = [(n, ft) for n in range(48) for ft in range(8)]
    order += [(n, ft) for n in range(48, 56) for ft in range(6)]
    order += [(n, ft) for p in range(3) for n in range(56, 60) for ft in (2*p, 2*p+1)]
    order += [(n, ft) for n in range(48, 60) for ft in (6, 7)]
    for n, ft in order: trw(24 + n//4, (n % 4)*8192, ft)
    return frags, order

def main_body():
    frags, order = build_frags()
    S = Sched(k, frags, AR)
    bar_hooks = {}
    def mk_after(st):
        def f():
            S.q['d'].extend(dma_items(st + 2))
            for h in bar_hooks.get(st, []): h()
        return f
    first_of = {}
    for i, fr in enumerate(frags):
        if fr["first"]:
            first_of[fr["stage"]] = fr
            if fr["stage"] > 0: fr["after_bar"] = mk_after(fr["stage"])
    def flag_tasks(phase, sref):
        return [Task(f"s_add_u32 s{sref}, s{NONCE}, {phase}"), Task(f"v_mov_b32 v{VFVAL}, s{sref}"), Task(FLAG_STORE, tag="flag")]
    def poll_tasks(name, voff, soff, sref, phase, then):
        c = poll_check(name, voff, soff, sref, phase)
        def fin():
            k.e(c[2]); then()
        return [Task(fn=lambda: k.wait_vm([("poll", name)])), Task(c[0]), Task(c[1]), Task(fn=fin)]
    k.region = "gemm1"
    S.prime(S.look)
    stamp()
    for kap in range(32):
        S.q['x'].extend(x_items(kap + XD))
        if TOUCH and kap < 30:
            sr, so = (WO, ST1) if kap < 16 else (W2, ST2)
            S.q['p'].append((None, f"buffer_load_dword v{VDUM}, v{VTCH}, {srd(sr)}, s{so} offen", "pf", f"s_add_u32 s{so}, s{so}, 512"))
        for ft in range(15):
            def mf(ar, ft=ft, kap=kap):
                out = []
                for tt in range(4):
                    acc = a(QACC + (ft*4+tt)*4, 4) if ft < 8 else v(FACC + ((ft-8)*4+tt)*4, 4)
                    out.append(f"{MFMA} {acc}, {a(ar,4)}, {xreg(kap, tt)}, {'0' if kap == 0 and ft < 8 else acc}")
                return out
            pre = (lambda kap=kap: k.wait_vm([("x", kap)])) if ft == 0 else None
            S.group(mf, pre=pre, nextpre=1 if ft == 14 else 0, vq={1: 'x', 3: 'd', 2: 'p'}.get(ft % 4) if ft < 14 else 'd')
    S.flush_side()
    stamp()
    k.region = "gelu"
    CQ, CG, C1 = 6, 8, 10
    qs = (128 ** -0.5) * math.log2(math.e)
    k.e(f"s_mov_b32 s{CQ}, {f32(qs)}\ns_mov_b32 s{CQ+1}, {f32(qs)}")
    if TOUCH: k.wait_vm(["pf"])
    T = VT
    for qt in range(4):
        for ks in range(4):
            for b in range(2):
                src = QACC + ((2*ks+b)*4 + qt)*4
                for r in range(4): k.e(f"v_accvgpr_read_b32 v{T+4*b+r}, a{src+r}")
            for p in range(4): k.e(f"v_pk_mul_f32 {v(T+2*p,2)}, {v(T+2*p,2)}, s[{CQ}:{CQ+1}]")
            for p in range(4): k.e(f"v_cvt_pk_bf16_f32 v{QF+(qt*4+ks)*4+p}, v{T+2*p}, v{T+2*p+1}")
    kk = 2*math.sqrt(2/math.pi)*math.log2(math.e)
    k.e(f"s_mov_b32 s{CG}, {f32(-0.044715*kk)}\ns_mov_b32 s{CG+1}, {f32(-0.044715*kk)}")
    k.e(f"v_mov_b32 v{T+8}, {f32(-kk)}\nv_mov_b32 v{T+9}, {f32(-kk)}")
    k.e(f"s_mov_b32 s{C1}, 1.0\ns_mov_b32 s{C1+1}, 1.0")
    k.e(f"s_mul_i32 s{SX}, s{TOK64}, 458752\ns_add_u32 s{SX}, s{SX}, {H_OFF}")
    k.e(f"s_lshr_b32 s{T1}, s{J}, 1\ns_mul_i32 s{T1}, s{T1}, {7*4096}\ns_add_u32 s{T0}, s{SX}, s{T1}")
    k.e(f"s_and_b32 s{T5}, s{J}, 1\ns_add_u32 s{T2}, s{T0}, {3*4096}\ns_lshl_b32 s{T1}, s{T5}, 3\ns_add_u32 s{T2}, s{T2}, s{T1}")
    k.e(f"s_lshl_b32 s{T1}, s{T5}, 14\ns_add_u32 s{T0}, s{T0}, s{T1}")
    k.e(f"s_mul_i32 s{T1}, s{R}, {28*4096}\ns_add_u32 s{SX}, s{SX}, s{T1}")
    k.e(f"s_lshl_b32 s{SXO}, s{TOK64}, 19\ns_add_u32 s{SXO}, s{SXO}, {O_OFF}\ns_lshl_b32 s{T1}, s{J}, 14\ns_add_u32 s5, s{SXO}, s{T1}")
    k.e(f"s_lshl_b32 s{T1}, s{R}, 17\ns_add_u32 s{SXO}, s{SXO}, s{T1}")
    def gelu4(x, dst, t):
        for p in range(2): k.e(f"v_pk_mul_f32 {v(t+2*p,2)}, {v(x+2*p,2)}, {v(x+2*p,2)}")
        for p in range(2): k.e(f"v_pk_fma_f32 {v(t+2*p,2)}, {v(t+2*p,2)}, s[{CG}:{CG+1}], {v(T+8,2)}")
        for p in range(2): k.e(f"v_pk_mul_f32 {v(t+2*p,2)}, {v(t+2*p,2)}, {v(x+2*p,2)}")
        for r in range(4): k.e(f"v_exp_f32 v{t+r}, v{t+r}")
        for p in range(2): k.e(f"v_pk_add_f32 {v(t+2*p,2)}, {v(t+2*p,2)}, s[{C1}:{C1+1}]")
        for r in range(4): k.e(f"v_rcp_f32 v{t+r}, v{t+r}")
        for p in range(2): k.e(f"v_pk_mul_f32 {v(t+2*p,2)}, {v(t+2*p,2)}, {v(x+2*p,2)}")
        for p in range(2): k.e(f"v_cvt_pk_bf16_f32 v{dst+p}, v{t+2*p}, v{t+2*p+1}")
    n = 0
    for m in range(3):
        for tt in range(4):
            d = 240 + (n % 4)*4; n += 1
            gelu4(FACC + ((2*m)*4+tt)*4, d, T); gelu4(FACC + ((2*m+1)*4+tt)*4, d+2, T+4)
            k.vmem(f"buffer_store_dwordx4 {v(d,4)}, v{VL16}, {srd(WS)}, s{T0} offen offset:{tt*1024} sc1", "hst")
        k.e(f"s_add_u32 s{T0}, s{T0}, 4096")
    for tt in range(4):
        d = 240 + (n % 4)*4; n += 1
        gelu4(FACC + (6*4+tt)*4, d, T + 4*(tt % 2))
        k.vmem(f"buffer_store_dwordx2 {v(d,2)}, v{VL16}, {srd(WS)}, s{T2} offen offset:{tt*1024} sc1", "hst")
    FLG8, FLG4 = 6, 7
    k.e(f"s_lshl_b32 s{T0}, s{RB}, 12\ns_add_u32 s{T0}, s{T0}, {FL_OFF}\ns_lshl_b32 s{T1}, s{R}, 10\ns_add_u32 s{FLG8}, s{T0}, s{T1}\ns_lshl_b32 s{T1}, s{FB}, 7\ns_add_u32 s{FLG4}, s{T0}, s{T1}")
    OST = 8
    PST, PLD = 66, 16
    k.e(f"s_lshl_b32 s{T0}, s{RB}, 3\ns_add_u32 s{T0}, s{T0}, s{FB}\ns_lshl_b32 s{T0}, s{T0}, 18\ns_add_u32 s{T0}, s{T0}, s{M0W}\ns_add_u32 s{T0}, s{T0}, {PF_OFF}")
    for m in range(4):
        k.e(f"s_add_u32 s{T1}, s{R}, {m+1}\ns_and_b32 s{T1}, s{T1}, 3\ns_lshl_b32 s{T2}, s{T1}, 12\ns_add_u32 s{OST+m}, s5, s{T2}")
        if m < 3:
            k.e(f"s_lshl_b32 s{T2}, s{T1}, 16\ns_lshl_b32 s{T3}, s{R}, 14\ns_add_u32 s{T2}, s{T2}, s{T3}\ns_add_u32 s{PST+m}, s{T0}, s{T2}")
            k.e(f"s_lshl_b32 s{T2}, s{R}, 16\ns_lshl_b32 s{T3}, s{T1}, 14\ns_add_u32 s{T2}, s{T2}, s{T3}\ns_add_u32 s{PLD+m}, s{T0}, s{T2}")
    k.region = "attn"
    stamp()
    first_of[18]["also"] = ["hst"]
    bar_hooks[18] = [lambda: S.tasks.extend(flag_tasks(2, T4))]
    for r in range(4): k.e(f"v_mov_b32 v{ONES+r}, 0x3f803f80")
    def sreg(u, qt, kt): return SB + (u % 2)*32 + qt*8 + kt*4
    cnt = [0]
    def aq():
        cnt[0] += 1
        return ['d', 'x'] if cnt[0] % 2 == 0 else None
    def qk_groups(u):
        for kt in range(2):
            for ks in range(4):
                def mf(ar, kt=kt, ks=ks):
                    out = []
                    for qt in range(4):
                        d = v(sreg(u, qt, kt), 4)
                        c = d if ks > 0 else ("0" if u < 2 else v(NEGM + qt*4, 4))
                        out.append(f"{MFMA} {d}, {a(ar,4)}, {v(QF+(qt*4+ks)*4,4)}, {c}")
                    return out
                S.group(mf, vq=aq(), gv=3 if cnt[0] % 2 else 2, rdsplit=False)
    def soft_tasks(u):
        tk = []
        def t(x): tk.append(Task(x, mark=("s", u)))
        if u == 0:
            for qt in range(4):
                b = sreg(0, qt, 0); m = NEGM + qt*4
                t(f"v_max3_f32 v{m}, v{b}, v{b+1}, v{b+2}"); t(f"v_max3_f32 v{m}, v{m}, v{b+3}, v{b+4}")
                t(f"v_max3_f32 v{m}, v{m}, v{b+5}, v{b+6}"); t(f"v_max_f32 v{m}, v{m}, v{b+7}")
            for sw in ("32", "16"):
                for qt in range(4): t(f"v_mov_b32 v{NEGM+qt*4+1}, v{NEGM+qt*4}")
                for qt in range(4): t(f"v_permlane{sw}_swap_b32 v{NEGM+qt*4}, v{NEGM+qt*4+1}")
                for qt in range(4): t(f"v_max_f32 v{NEGM+qt*4}, v{NEGM+qt*4}, v{NEGM+qt*4+1}")
            for qt in range(4):
                for r in range(3, -1, -1): t(f"v_sub_f32 v{NEGM+qt*4+r}, 0, v{NEGM+qt*4}")
        for qt in range(4):
            b = sreg(u, qt, 0)
            for p in range(4):
                for r in (2*p, 2*p+1):
                    if u < 2: t(f"v_add_f32 v{b+r}, v{b+r}, v{NEGM+qt*4}")
                    t(f"v_exp_f32 v{b+r}, v{b+r}")
                t(f"v_cvt_pk_bf16_f32 v{b+p}, v{b+2*p}, v{b+2*p+1}")
        return tk
    def pv_groups(u):
        first = u == 0
        for dt in range(8):
            def mf(ar, dt=dt):
                return [f"{MFMA} {a(QACC + (dt*4+qt)*4, 4)}, {a(ar,4)}, {v(sreg(u, qt, 0),4)}, {'0' if first else a(QACC + (dt*4+qt)*4, 4)}" for qt in range(4)]
            S.group(mf, vq=aq(), gv=3 if cnt[0] % 2 else 2, rdsplit=False)
        S.group(lambda _: [f"{MFMA} {v(LACC+qt*4,4)}, {v(ONES,4)}, {v(sreg(u, qt, 0),4)}, {'0' if first else v(LACC+qt*4,4)}" for qt in range(4)], frag=False)
    qk_groups(0)
    S.tasks.extend(soft_tasks(0))
    for u in range(16):
        if u == 11: S.q['x'].append((None, poll_load(VFP8, FLG8), ("poll", "h"), None))
        if u + 1 < 16: qk_groups(u + 1)
        S.flush(("s", u))
        if u == 12:
            S.tasks.extend(poll_tasks("h", VFP8, FLG8, T4, 2, lambda: [S.q['x'].extend(act_items(n)) for n in range(AD)]))
        if u + 1 < 16: S.tasks.extend(soft_tasks(u + 1))
        pv_groups(u)
    S.flush()
    stamp()
    k.region = "chk"
    RCP = 228
    k.e(f"s_mov_b32 s{T5}, 0")
    k.e("L_norm:")
    k.e("s_nop 7")
    k.e(f"v_add_f32 v{VT}, v{LACC}, v{LACC+4}\nv_add_f32 v{VT+1}, v{LACC+8}, v{LACC+12}\nv_add_f32 v{VT}, v{VT}, v{VT+1}")
    k.e(f"s_mov_b32 s{T0}, {f32(2.0**30)}\nv_cmp_nge_f32 vcc, s{T0}, v{VT}")
    k.e(f"s_cmp_lg_u32 s{T5}, 0\ns_cbranch_scc1 L_normok\ns_cbranch_vccnz L_slow\nL_normok:")
    k.region = "f2"
    tk = [Task(f"v_rcp_f32 v{RCP+qt}, v{LACC+qt*4}") for qt in range(4)]
    n = 0
    for m in range(4):
        for qt in range(4):
            t0 = 192 + (n % 2)*8; d = 240 + (n % 4)*4; n += 1
            for b in range(2):
                src = QACC + ((2*m+b)*4+qt)*4
                for r in range(4): tk.append(Task(f"v_accvgpr_read_b32 v{t0+4*b+r}, a{src+r}"))
            for r in range(8): tk.append(Task(f"v_mul_f32 v{t0+r}, v{t0+r}, v{RCP+qt}"))
            for p in range(4): tk.append(Task(f"v_cvt_pk_bf16_f32 v{d+p}, v{t0+2*p}, v{t0+2*p+1}"))
            OM = opt('--omode', 'sc1')
            if OM == 'none' and n > 1: tk.append(Task(f"v_mov_b32 v{d}, v{d+1}", mark="o"))
            else: tk.append(Task(f"buffer_store_dwordx4 {v(d,4)}, v{VL16}, {srd(WS)}, s{OST+m} offen offset:{qt*1024} {'' if OM == 'plain' else OM.replace('_', ' ').replace('none', 'sc1')}", tag="ost", mark="o", after=S.nm + opt('--opace', 0)*n))
    S.tasks.extend(tk)
    OBAR = opt('--obar', 28)
    first_of[OBAR]["also"] = ["ost"]
    bar_hooks[OBAR] = [lambda: S.tasks.extend(flag_tasks(3, T4))]
    gate = {"o": False}
    pending = []
    def acc_of(n, ft, tt):
        if n < 28: return v(F2A + (ft*4+tt)*4, 4)
        return a(QACC + (ft*4+tt)*4, 4) if ft < 6 else v(SOWN + ((ft-6)*4+tt)*4, 4)
    def open_o():
        gate["o"] = True
        for it in pending: S.q['x'].extend(it)
    FIN = 64
    GOWN = F2A + 96
    COL = T3
    def f_gather():
        tk = []
        for i in range(3):
            for tt in range(4): tk.append(Task(f"buffer_load_dwordx4 {v(FIN+(i*4+tt)*4,4)}, v{VL16}, {srd(WS)}, s{PLD+i} offen offset:{tt*1024} sc1", tag="fin"))
        S.tasks.extend(tk)
    def f_finish():
        tk = [Task(fn=lambda: k.wait_vm(["fin", "b2", "xres"]))]
        for b in range(2):
            tk += [Task(f"v_lshlrev_b32 v{48+4*b}, 16, v{44+2*b}"), Task(f"v_and_b32 v{49+4*b}, 0xffff0000, v{44+2*b}"),
                   Task(f"v_lshlrev_b32 v{50+4*b}, 16, v{45+2*b}"), Task(f"v_and_b32 v{51+4*b}, 0xffff0000, v{45+2*b}")]
        for tt in range(4):
            for b in range(2):
                for p in range(2):
                    x = XRES + (b*4+tt)*4 + 2*p; src = 112 + (b*4+tt)*2 + p
                    tk += [Task(f"v_lshlrev_b32 v{x}, 16, v{src}"), Task(f"v_and_b32 v{x+1}, 0xffff0000, v{src}")]
        nt = 0
        for tt in range(4):
            for b in range(2):
                g = GOWN + (b*4+tt)*4
                for r in range(4): tk.append(Task(f"v_add_f32 v{g+r}, v{g+r}, v{48+4*b+r}"))
                for i in range(3):
                    for p in range(2):
                        src = FIN + (i*4+tt)*4 + 2*b + p; t = 40 + (nt % 2)*2; nt += 1
                        tk += [Task(f"v_lshlrev_b32 v{t}, 16, v{src}"), Task(f"v_and_b32 v{t+1}, 0xffff0000, v{src}"),
                               Task(f"v_add_f32 v{g+2*p}, v{g+2*p}, v{t}"), Task(f"v_add_f32 v{g+2*p+1}, v{g+2*p+1}, v{t+1}")]
        for t_ in tk: t_.mark = "g"
        for tt in range(4):
            for b in range(2):
                g = GOWN + (b*4+tt)*4
                for r in range(4): tk.append(Task(f"v_mul_f32 v{56+r}, {f32(-math.log2(math.e))}, v{g+r}"))
                for r in range(4): tk.append(Task(f"v_exp_f32 v{56+r}, v{56+r}"))
                for r in range(4): tk.append(Task(f"v_add_f32 v{56+r}, 1.0, v{56+r}"))
                for r in range(4): tk.append(Task(f"v_rcp_f32 v{56+r}, v{56+r}"))
                for r in range(4): tk.append(Task(f"v_mul_f32 v{g+r}, v{g+r}, v{56+r}"))
        for m in range(3): tk += [Task(f"s_add_u32 s{PST+m}, s{PST+m}, {PS_OFF-PF_OFF}"), Task(f"s_add_u32 s{PLD+m}, s{PLD+m}, {PS_OFF-PF_OFF}")]
        S.tasks.extend(tk)
    def s_publish(m):
        tk = []
        for tt in range(4):
            t0 = 40 if tt % 2 == 0 else 48; d = t0
            for b in range(2):
                src = QACC + ((2*m+b)*4+tt)*4
                for r in range(4): tk.append(Task(f"v_accvgpr_read_b32 v{t0+4*b+r}, a{src+r}"))
            for p in range(4): tk.append(Task(f"v_cvt_pk_bf16_f32 v{d+p}, v{t0+2*p}, v{t0+2*p+1}"))
            tk.append(Task(f"buffer_store_dwordx4 {v(d,4)}, v{VL16}, {srd(WS)}, s{PST+m} offen offset:{tt*1024} sc1", tag="pst"))
        S.tasks.extend(tk)
    seen = set(); started = set()
    OPOLL = opt('--opoll', 20); FBAR = opt('--fbar', 33); FPOLL = opt('--fpoll', 37); SFLAG = opt('--sflag', 4)
    for gi, (n, ft) in enumerate(order):
        new = n not in seen
        if gi % 32 == 0: stamp('p3a')
        if gi >= 224 and gi % 16 == 0: stamp('p3b')
        if gi >= 320 and gi % 16 == 0: stamp('p3c')
        if gi < 224 and gi % 16 == 0: stamp('p3d')
        if new:
            seen.add(n)
            if n == 28:
                k.region = "s2"; stamp()
                S.flush("o")
                tk = []
                for m in range(3):
                    for tt in range(4):
                        d = F2A + ((2*m)*4+tt)*4; e_ = F2A + ((2*m+1)*4+tt)*4
                        tk += [Task(f"v_cvt_pk_bf16_f32 v{d}, v{d}, v{d+1}"), Task(f"v_cvt_pk_bf16_f32 v{d+1}, v{d+2}, v{d+3}"),
                               Task(f"v_cvt_pk_bf16_f32 v{d+2}, v{e_}, v{e_+1}"), Task(f"v_cvt_pk_bf16_f32 v{d+3}, v{e_+2}, v{e_+3}"),
                               Task(f"buffer_store_dwordx4 {v(d,4)}, v{VL16}, {srd(WS)}, s{PST+m} offen offset:{tt*1024} sc1", tag="pst")]
                tk += [Task(f"s_lshl_b32 s{COL}, s{FB}, 8"), Task(f"s_lshl_b32 s{T0}, s{R}, 6"), Task(f"s_add_u32 s{COL}, s{COL}, s{T0}"),
                       Task(f"v_and_b32 v{WK}, 15, v0"), Task(f"v_lshlrev_b32 v{WK}, 11, v{WK}"), Task(f"v_add_u32 v{WK+1}, v{WK}, v{VQ8}"),
                       Task(f"v_lshl_add_u32 v{WK}, v{VQ8}, 1, v{WK}"), Task(f"s_lshl_b32 s{T0}, s{TOK64}, 17"), Task(f"s_add_u32 s{OST}, s{COL}, s{T0}")]
                for tt in range(1, 4): tk.append(Task(f"s_add_u32 s{OST+tt}, s{OST}, {tt*32768}"))
                for b in range(2): tk.append(Task(f"buffer_load_dwordx2 {v(44+2*b,2)}, v{VQ8}, {srd(B2)}, s{COL} offen offset:{32*b}", tag="b2"))
                S.tasks.extend(tk)
                first_of[FBAR]["also"] = ["pst"]
                def hook():
                    S.tasks.extend(flag_tasks(4, T4))
                    S.tasks.extend(Task(f"buffer_load_dwordx2 {v(112+(b*4+tt)*2,2)}, v{WK+1}, {srd(XS)}, s{OST+tt} offen offset:{32*b}", tag="xres") for tt in range(4) for b in range(2))
                bar_hooks[FBAR] = [hook]
            if n == OPOLL: S.q['x'].append((None, poll_load(VFP8, FLG8), ("poll", "o"), None))
            if n == OPOLL + 2: S.tasks.extend(poll_tasks("o", VFP8, FLG8, T4, 3, open_o))
            if n == FPOLL: S.q['x'].append((None, poll_load(VFP4, FLG4), ("poll", "pf"), None))
            if n == FPOLL + 2: S.tasks.extend(poll_tasks("pf", VFP4, FLG4, T4, 4, f_gather))
            if n == FPOLL + 5: f_finish()
            if n + AD == 54: S.flush("g")
            it = act_items(n + AD)
            if n + AD >= 28 and not gate["o"]: pending.append(it)
            else: S.q['x'].extend(it)
        if gi >= 48*8 + 48 and (gi - 48*8 - 48) % 8 == 0 and gi > 48*8 + 48 and gi <= 48*8 + 72: s_publish((gi - 48*8 - 48)//8 - 1)
        if gi == len(order) - SFLAG:
            S.flush()
            S.tasks.extend([Task(fn=lambda: k.wait_vm(["pst"])), Task(fn=lambda: k.e("s_barrier"))] + flag_tasks(5, T4) + [Task(poll_load(VFP4, FLG4), tag=("poll", "ps"))])
        def mf(ar, n=n, ft=ft):
            z = n in (0, 28)
            return [f"{MFMA} {acc_of(n, ft, tt)}, {a(ar,4)}, {actreg(n, tt)}, {'0' if z else acc_of(n, ft, tt)}" for tt in range(4)]
        def pre(n=n):
            assert not any(it[2] == ("act", n) for it in S.q['x']), n
            k.wait_vm([("act", n)])
        nxt = gi + 1 < len(order) and order[gi+1][0] not in seen and order[gi+1][0] != n
        S.group(mf, pre=pre if new else None, nextpre=1 if nxt else 0, vq=['x', 'd'] if gi % 2 == 0 else (['d', 'x'] if gi % 4 == 1 else (['x'] if len(S.q['x']) > 4 else None)))
    S.flush(); S.flush_side()
    stamp(); stamp('p3c')
    k.region = "final"
    SEL = 40
    k.e(f"v_and_b32 v46, 15, v0\nv_lshrrev_b32 v47, 1, v{VQ8}\nv_sub_u32 v46, v46, v47")
    k.e(f"v_mov_b32 v{SEL}, 0\nv_mov_b32 v{SEL+1}, 0\nv_mov_b32 v{SEL+4}, 0\nv_mov_b32 v{SEL+5}, 0\nv_mov_b32 v47, 0x3f80\nv_mov_b32 v48, 0x3f800000")
    for p in range(2):
        k.e(f"v_cmp_eq_u32 vcc, {2*p}, v46\nv_cndmask_b32 v{SEL+2+p}, 0, v47, vcc\nv_cmp_eq_u32 vcc, {2*p+1}, v46\nv_cndmask_b32 v{SEL+2+p}, v{SEL+2+p}, v48, vcc")
    k.wait_vm([("poll", "ps")])
    for t in poll_check("ps", VFP4, FLG4, T4, 5): k.e(t)
    stamp()
    for i in range(3):
        for tt in range(4): k.vmem(f"buffer_load_dwordx4 {a((i*4+tt)*4,4)}, v{VL16}, {srd(WS)}, s{PLD+i} offen offset:{tt*1024} sc1", ("sin", i))
    for i in range(3):
        k.wait_vm([("sin", i)])
        for tt in range(4):
            for b in range(2):
                d = v(SOWN + (b*4+tt)*4, 4)
                k.e(f"{MFMA} {d}, {v(SEL + 2 - 2*b, 4)}, {a((i*4+tt)*4,4)}, {d}")
    stamp()
    for tt in range(4):
        d = 64 + tt*4
        for b in range(2):
            for p in range(2):
                o = (b*4+tt)*4 + 2*p
                k.e(f"v_pk_fma_f32 {v(SOWN+o,2)}, {v(SOWN+o,2)}, {v(GOWN+o,2)}, {v(XRES+o,2)}")
        for b in range(2):
            for p in range(2):
                o = SOWN + (b*4+tt)*4 + 2*p
                k.e(f"v_cvt_pk_bf16_f32 v{d+2*b+p}, v{o}, v{o+1}")
        k.e(f"v_permlane32_swap_b32 v{d}, v{d+2}\nv_permlane32_swap_b32 v{d+1}, v{d+3}")
        k.e(f"v_permlane16_swap_b32 v{d}, v{d+2}\nv_permlane16_swap_b32 v{d+1}, v{d+3}")
        k.e(f"buffer_store_dwordx4 {v(d,4)}, v{WK}, {srd(OUT)}, s{OST+tt} offen")
    if STAMPS:
        k.e("s_waitcnt vmcnt(0)"); stamp()
        k.e(f"s_cmp_lg_u32 s{WAVE}, 0\ns_cbranch_scc1 L_end\ns_waitcnt lgkmcnt(0)")
        k.e(f"s_lshl_b32 s{T0}, s2, 6\ns_add_u32 s{T0}, s{T0}, {STAMP_OFF}\nv_mov_b32 v2, 0\ns_mov_b64 exec, 1")
        for n in range(nstamp[0]):
            k.e(f"v_mov_b32 v{4+n}, s{STB+2*n}\nbuffer_store_dword v{4+n}, v2, {srd(WS)}, s{T0} offen offset:{4*n}")
    k.e("L_end:\ns_endpgm")
    k.region = "slow"
    FR = 160
    k.e(f"L_slow:\ns_mov_b32 s{T5}, 1")
    k.e(f"s_lshl_b32 s{T0}, s{R}, 19\ns_add_u32 s{T0}, s{T0}, {1536*256}")
    k.e(f"v_and_b32 v40, 15, v0\nv_lshlrev_b32 v41, 8, v40\nv_lshl_add_u32 v41, v{VQ8}, 1, v41")
    k.e(f"v_lshlrev_b32 v42, 7, v{VQ8}\nv_lshl_add_u32 v42, v40, 1, v42")
    def loadk():
        k.e(f"s_lshl_b32 s{T2}, s{T1}, 13\ns_add_u32 s{T2}, s{T2}, s{T0}\ns_add_u32 s{T3}, s{T2}, 4096")
        for n in range(8): k.e(f"buffer_load_dwordx4 {v(FR+n*4,4)}, v41, {srd(KC)}, s{T2 + n//4} offen offset:{(n%4)*64}")
        k.e("s_waitcnt vmcnt(0)")
    def qk(cneg):
        for kt in range(2):
            for ks in range(4):
                for qt in range(4):
                    d = v(sreg(0, qt, kt), 4)
                    c = d if ks > 0 else (v(NEGM+qt*4, 4) if cneg else "0")
                    k.e(f"{MFMA} {d}, {v(FR+(kt*4+ks)*4,4)}, {v(QF+(qt*4+ks)*4,4)}, {c}")
    for qt in range(4): k.e(f"v_mov_b32 v{NEGM+qt*4}, 0xff800000")
    k.e(f"s_mov_b32 s{T1}, 0\nL_slow1:")
    loadk(); qk(False)
    for qt in range(4):
        b = sreg(0, qt, 0); m = NEGM + qt*4
        for p in range(4): k.e(f"v_max3_f32 v{m}, v{m}, v{b+2*p}, v{b+2*p+1}")
    k.e(f"s_add_u32 s{T1}, s{T1}, 1\ns_cmp_lt_u32 s{T1}, 16\ns_cbranch_scc1 L_slow1")
    for qt in range(4):
        reduce4(NEGM+qt*4, NEGM+qt*4+1, "v_max_f32")
        for r in range(3, -1, -1): k.e(f"v_sub_f32 v{NEGM+qt*4+r}, 0, v{NEGM+qt*4}")
    for i in range(128): k.e(f"v_accvgpr_write_b32 a{QACC+i}, 0")
    for i in range(16): k.e(f"v_mov_b32 v{LACC+i}, 0")
    k.e(f"s_mov_b32 s{T1}, 0\nL_slow2:")
    loadk(); qk(True)
    for qt in range(4):
        b = sreg(0, qt, 0)
        for r in range(8): k.e(f"v_exp_f32 v{b+r}, v{b+r}")
        for p in range(4): k.e(f"v_cvt_pk_bf16_f32 v{b+p}, v{b+2*p}, v{b+2*p+1}")
    for dt in range(8):
        k.e(f"s_lshl_b32 s3, s{R}, 1\ns_add_u32 s3, s3, {dt+2}\ns_and_b32 s3, s3, 7\ns_lshl_b32 s3, s3, 5\nv_add_u32 v43, s3, v42")
        for e_ in range(8):
            k.e(f"buffer_load_short_d16{'_hi' if e_ % 2 else ''} v{FR+dt*4+e_//2}, v43, {srd(VC)}, s{T2 + e_//4} offen offset:{(e_%4)*256}")
        k.e("s_waitcnt vmcnt(0)")
    for dt in range(8):
        for qt in range(4):
            d = a(QACC + (dt*4+qt)*4, 4)
            k.e(f"{MFMA} {d}, {v(FR+dt*4,4)}, {v(sreg(0, qt, 0),4)}, {d}")
    for qt in range(4): k.e(f"{MFMA} {v(LACC+qt*4,4)}, {v(ONES,4)}, {v(sreg(0, qt, 0),4)}, {v(LACC+qt*4,4)}")
    k.e("s_nop 7")
    k.e(f"s_add_u32 s{T1}, s{T1}, 1\ns_cmp_lt_u32 s{T1}, 16\ns_cbranch_scc1 L_slow2")
    k.e("s_branch L_norm")
    emit_spins()
    print("over:", S.over, "nops:", k.nopstat)

def main():
    out = sys.argv[1] if len(sys.argv) > 1 and sys.argv[1].endswith(".s") else f"cdna_kernels/{NAME}.s"
    start(); main_body()
    for p in check_hazards(k.L): print("HAZARD", p)
    txt = "; generated by dev/gen3.py\n"
    txt += f"; @launch grid=(256,1,1) block=(256,1,1) lds={LDS_SCR+256}\n"
    txt += '.amdgcn_target "amdgcn-amd-amdhsa--gfx950"\n.text\n' + k.text()
    txt += f""".section .rodata,"a"
.p2align 6
.amdhsa_kernel {NAME}_kernel
  .amdhsa_next_free_vgpr 512
  .amdhsa_next_free_sgpr 102
  .amdhsa_accum_offset 256
  .amdhsa_group_segment_fixed_size 0
  .amdhsa_kernarg_size 104
  .amdhsa_user_sgpr_count 2
  .amdhsa_user_sgpr_kernarg_segment_ptr 1
  .amdhsa_system_sgpr_workgroup_id_x 1
.end_amdhsa_kernel
"""
    open(out, "w").write(txt)
    print("wrote", out, len(txt), "bytes", len(k.L), "lines")
main()
```

```python
import sys, struct, math
from asm2 import K, Task, Sched, emit_now, v, a, s, check_hazards

NAME = "recurrent_scan__sliding_block_cached__dense_activation_gelu__prompt"
MB = 1 << 20
XN_OFF, FL_OFF, O_OFF, H_OFF, PF_OFF, PS_OFF, STAMP_OFF = 0, 4*MB, 8*MB, 24*MB, 40*MB, 56*MB, 80*MB
WS_BYTES = 256*MB
def opt(name, default):
    return type(default)(sys.argv[sys.argv.index(name)+1]) if name in sys.argv else default
STAMPS = '--stamps' in sys.argv
XD = opt('--xd', 4)
AD = opt('--ad', 7)
TOUCH = '--notouch' not in sys.argv
NT = '' if '--nont' in sys.argv else ' nt'
SPIN_LIMIT = 1 << 18
def f32(x): return "0x%08x" % struct.unpack("<I", struct.pack("<f", x))[0]
MFMA = "v_mfma_f32_16x16x32_bf16"
LDS_SCR = 131072

WQ, W1, WS, B1, KC, VC, WO, W2, XS, OUT, DBG, B2 = 4, 8, 12, 16, 20, 24, 28, 32, 36, 40, 44, 48
WAVE, RB, J, R, FB, TOK64, M0W, M0KV, M0P, SKV, SW3, SX, NONCE, FLOWN, SWQ, SW1, ST1, ST2 = range(52, 70)
T0, T1, T2, T3, T4, T5 = range(70, 76)
CB = 76
STB = 78
CPF = opt('--cpf', 7)
def srd(n): return f"s[{n}:{n+3}]"
VP3 = 1
VKV = 9
VL16, VFP8, VFP4 = 13, 14, 15
VLA, VLB = 58, 59
WV, WK = 16, 32
VT = 40
VCD, VCODE = 56, 57
VFST, VFVAL, VPOLL, VQ8 = 60, 61, 62, 63
G1D, G1Q, G1F, VTCH, VDUM = 64, 72, 80, 96, 97
QF, FACC, SB, NEGM, ONES, LACC = 64, 128, 128, 192, 208, 212
SACC = 64
OF = 192
FOWN, XRES = 192, 224
TAILK = opt('--tailk', 14)
def vl(tt): return f"v{VLA if tt < 2 else VLB}"
def to(tt): return (tt & 1)*1024
QACC, AR, XR = 0, 128, 160

k = K()
nstamp = [0]
SSET = opt('--sset', 'main')
def stamp(which='main'):
    if STAMPS and (which == SSET or which == 'all') and nstamp[0] < 12:
        n = nstamp[0]; nstamp[0] += 1
        k.e(f"{'s_memtime' if '--cyc' in sys.argv else 's_memrealtime'} s[{STB+2*n}:{STB+2*n+1}]")
spins = []
def poll_load(voff, soff): return f"buffer_load_dword v{VPOLL}, v{voff}, {srd(WS)}, s{soff} offen sc1"
def poll_check(name, voff, soff, sref, phase):
    spins.append((name, voff, soff, sref, phase))
    return [f"v_subrev_u32 v{VPOLL}, s{sref}, v{VPOLL}", f"v_cmp_le_u32 vcc, {16-phase}, v{VPOLL}", f"s_cbranch_vccnz SPIN_{name}\nBACK_{name}:"]
def emit_spins():
    for name, voff, soff, sref, phase in spins:
        k.e(f"SPIN_{name}:\ns_mov_b32 s3, {SPIN_LIMIT}\nSPINL_{name}:")
        k.e(poll_load(voff, soff)); k.e("s_waitcnt vmcnt(0)")
        k.e(f"v_subrev_u32 v{VPOLL}, s{sref}, v{VPOLL}\nv_cmp_le_u32 vcc, {16-phase}, v{VPOLL}\ns_cbranch_vccz BACK_{name}")
        k.e(f"s_sub_u32 s3, s3, 1\ns_cmp_lg_u32 s3, 0\ns_cbranch_scc1 SPINL_{name}\ns_branch BACK_{name}")
FLAG_STORE = f"buffer_store_dword v{VFVAL}, v{VFST}, {srd(WS)}, s{FLOWN} offen sc1"

def code_touch(d): return f"global_load_dword v{d}, v{VCODE}, s[{CB}:{CB+1}]"
def reduce4(x, t, op):
    k.e(f"v_mov_b32 v{t}, v{x}\nv_permlane32_swap_b32 v{x}, v{t}\n{op} v{x}, v{x}, v{t}")
    k.e(f"v_mov_b32 v{t}, v{x}\nv_permlane16_swap_b32 v{x}, v{t}\n{op} v{x}, v{x}, v{t}")
def round_bf16(d, x):
    k.e(f"v_cvt_pk_bf16_f32 v{d}, v{x}, v{x}\nv_and_b32 v{d}, 0xffff0000, v{d}")
def mk_srd(d, nbytes):
    k.e(f"s_and_b32 s{d+1}, s{d+1}, 0xffff\ns_mov_b32 s{d+2}, {nbytes}\ns_mov_b32 s{d+3}, 0x20000")

def dma_items(st):
    it = []; slot = (st % 4)*32768
    if st < 16:
        for m in range(2):
            for i in range(4):
                it.append((f"s_add_u32 m0, s{M0W}, {slot + m*16384}" if i == 0 else None,
                           f"buffer_load_dwordx4 v{G1D+4*m+i}, {srd(W1 if m else WQ)}, s{SWQ+m} offen offset:{i*1024}{NT} lds", ("dma", st),
                           f"s_add_u32 s{SWQ+m}, s{SWQ+m}, {64*(7168 if m else 8192)}" if i == 3 else None))
    elif st < 24:
        for bl in range(4):
            b = (st - 16)*4 + bl
            isk = b == 0 or (b % 2 == 1 and b < 31)
            for i in range(2):
                post = None
                if i == 1 and (isk or b == 30): post = f"s_add_u32 s{SKV}, s{SKV}, 8192"
                it.append((f"s_add_u32 m0, s{M0KV}, {slot + bl*8192}" if i == 0 else None,
                           f"buffer_load_dwordx4 v{VKV + (0 if isk else 2) + i}, {srd(KC if isk else VC)}, s{SKV} offen offset:{i*1024} lds", ("dma", st), post))
    elif st < 39:
        for i in range(8):
            post = None
            if i == 7:
                if st == 24: post = [f"s_mul_i32 s{SW3}, s{R}, {896*2048}"]
                elif st < 31: post = [f"s_add_u32 s{SW3}, s{SW3}, {128*2048}"]
                else:
                    post = [f"s_lshl_b32 s{SW3}, s{J}, 18"] if st == 31 else []
                    post += [f"s_add_u32 s{SW3}, s{SW3}, {128*2048}", f"s_and_b32 s{SW3}, s{SW3}, 0x1fffff", f"s_or_b32 s{SW3}, s{SW3}, s{SWB}"]
            it.append((f"s_add_u32 m0, s{M0O if st == 24 else M0P}, {slot + (i//4)*4096}" if i % 4 == 0 else None,
                       f"buffer_load_dwordx4 v{VP3+i}, {srd(W2 if 25 <= st < 32 else WO)}, s{SW3} offen offset:{(i%4)*1024} lds", ("dma", st), post))
    return it
def xreg(kap, tt): return a(XR + (kap % 6)*16 + tt*4, 4)
def x_items(kap):
    if kap >= 32: return []
    return [(None, f"buffer_load_dwordx4 {xreg(kap, tt)}, {vl(tt)}, {srd(WS)}, s{SX} offen offset:{to(tt)} sc1", ("x", kap),
             f"s_add_u32 s{SX}, s{SX}, 4096" if tt == 3 else None) for tt in range(4)]
SXO, SOB, SWB, M0O = 4, 5, 69, 19
NACT = 56
RING = [XR + 16*i for i in range(6)] + [96, 112]
def actreg(n, tt):
    return a((RING[n % 8] if n < NACT - 6 else (n - (NACT - 6))*16) + tt*4, 4)
def act_items(n):
    if n >= NACT: return []
    post = [f"s_add_u32 s{SX}, s{SX}, 4096"]
    if n == 27: post = [f"s_add_u32 s{SX}, s{SOB}, 16384"]
    if n >= 27 and n % 4 == 3: post += [f"s_and_b32 s{SX}, s{SX}, 0x1ffff", f"s_or_b32 s{SX}, s{SX}, s{SXO}"]
    return [(None, f"buffer_load_dwordx4 {actreg(n, tt)}, {vl(tt)}, {srd(WS)}, s{SX} offen offset:{to(tt)} sc1", ("act", n), post if tt == 3 else None) for tt in range(4)]

def facc(ft, tt): return FACC + (ft*16 if ft < 7 else 104) + tt*4
def start():
    k.region = "start"
    k.e(f".globl {NAME}_kernel\n.p2align 8\n.type {NAME}_kernel,@function\n{NAME}_kernel:")
    k.e("s_cmp_lt_u32 s2, 256\ns_cbranch_scc1 L_go\ns_endpgm\nL_go:")
    stamp()
    k.e(f"s_getpc_b64 s[{CB}:{CB+1}]\nL_pc:")
    for d, off in ((XS, 0), (WQ, 24), (W1, 48), (WS, 96), (DBG, 88)):
        k.e(f"s_load_dwordx2 s[{d}:{d+1}], s[0:1], {off}")
    k.e(f"v_lshrrev_b32 v1, 6, v0\nv_and_b32 v0, 63, v0\nv_readfirstlane_b32 s{WAVE}, v1")
    k.e(f"s_and_b32 s{T0}, s2, 7\ns_lshr_b32 s{T1}, s2, 3")
    k.e(f"s_and_b32 s{RB}, s{T0}, 1\ns_lshl_b32 s{RB}, s{RB}, 2\ns_and_b32 s{T2}, s{T1}, 3\ns_add_u32 s{RB}, s{RB}, s{T2}")
    k.e(f"s_lshr_b32 s{R}, s{T0}, 1\ns_lshr_b32 s{FB}, s{T1}, 2\ns_lshl_b32 s{J}, s{R}, 3\ns_add_u32 s{J}, s{J}, s{FB}")
    k.e(f"s_lshl_b32 s{TOK64}, s{RB}, 2\ns_add_u32 s{TOK64}, s{TOK64}, s{WAVE}")
    k.e(f"s_lshl_b32 s{M0W}, s{WAVE}, 12\ns_lshl_b32 s{M0KV}, s{WAVE}, 11\ns_lshl_b32 s{M0P}, s{WAVE}, 13")
    k.e(f"v_and_b32 v40, 7, v0\nv_lshrrev_b32 v41, 3, v0\nv_lshlrev_b32 v42, 11, v40\nv_lshl_add_u32 v42, v41, 4, v42")
    k.e(f"s_lshl_b32 s{T0}, s{RB}, 19\ns_lshl_b32 s{T1}, s{J}, 14\ns_add_u32 s{T0}, s{T0}, s{T1}\ns_lshl_b32 s{T1}, s{WAVE}, 9\ns_add_u32 s{T0}, s{T0}, s{T1}")
    k.e("s_waitcnt lgkmcnt(0)")
    mk_srd(XS, 4*MB)
    RAW, X = 128, 144
    for i in range(4): k.vmem(f"buffer_load_dwordx4 {v(RAW+4*i,4)}, v42, {srd(XS)}, s{T0} offen offset:{128*i}", ("ln", i))
    k.e(f"s_lshr_b32 s{T1}, s2, 1\ns_and_b32 s{T1}, s{T1}, 12\ns_add_u32 s{T1}, s{T1}, s{WAVE}\ns_lshl_b32 s{T1}, s{T1}, 13")
    k.e(f"v_lshlrev_b32 v{VCODE}, 7, v0\nv_add_u32 v{VCODE}, s{T1}, v{VCODE}\nv_min_u32 v{VCODE}, L_code_end-L_pc-4, v{VCODE}")
    if CPF & 1: k.vmem(code_touch(VDUM), "cpf")
    for d, off in ((B1, 56), (KC, 8), (VC, 16), (WO, 32), (W2, 64), (OUT, 80), (B2, 72)):
        k.e(f"s_load_dwordx2 s[{d}:{d+1}], s[0:1], {off}")
    mk_srd(WQ, 1024*8192); mk_srd(W1, 1024*7168); mk_srd(WS, WS_BYTES); mk_srd(DBG, 256)
    k.e(f"v_lshrrev_b32 v44, 4, v0\nv_and_b32 v45, 15, v0")
    k.e(f"s_lshl_b32 s{T1}, s{WAVE}, 4\nv_add_u32 v46, s{T1}, v44")
    k.e(f"s_lshl_b32 s{T2}, s{J}, 8\ns_and_b32 s{T5}, s{J}, 1\ns_mul_i32 s{T3}, s{J}, 224\ns_lshl_b32 s{T4}, s{T5}, 5\ns_sub_u32 s{T3}, s{T3}, s{T4}\ns_movk_i32 s{T4}, 7168")
    k.e(f"v_mul_lo_u32 v51, v46, s{T4}")
    for h in range(2):
        k.e(f"v_or_b32 v47, {4*h}, v44\nv_lshlrev_b32 v47, 1, v47\nv_xor_b32 v47, v45, v47\nv_lshlrev_b32 v47, 4, v47")
        k.e(f"v_lshl_add_u32 v48, v46, 13, v47\nv_add_u32 v48, s{T2}, v48\nv_add3_u32 v50, v47, v51, s{T3}")
        for i in (2*h, 2*h+1): k.e(f"v_add_u32 v{G1D+i}, {i*(4*8192-1024)}, v48\nv_add_u32 v{G1D+4+i}, {i*(4*7168-1024)}, v50")
    k.e(f"s_mov_b32 s{SWQ}, 0\ns_mov_b32 s{SW1}, 0")
    k.e(f"s_lshl_b32 s{FLOWN}, s{RB}, 12\ns_add_u32 s{FLOWN}, s{FLOWN}, {FL_OFF}")
    k.e(f"s_or_b32 s{T1}, s{J}, s{WAVE}\ns_cmp_lg_u32 s{T1}, 0\ns_cbranch_scc1 L_nolead")
    k.e(f"v_and_b32 v52, 31, v0\nv_lshlrev_b32 v52, 7, v52")
    k.e(f"buffer_load_dword v53, v52, {srd(WS)}, s{FLOWN} offen sc1\ns_waitcnt vmcnt(0)")
    k.e(f"v_readfirstlane_b32 s{T1}, v53")
    k.e(f"L_lead:\ns_add_u32 s{T1}, s{T1}, 16\ns_cmp_eq_u32 s{T1}, 0\ns_cbranch_scc1 L_lead")
    k.e(f"v_subrev_u32 v54, s{T1}, v53\nv_cmp_gt_u32 vcc, 16, v54\ns_cbranch_vccnz L_lead")
    k.e(f"v_mov_b32 v54, s{T1}\nv_mov_b32 v55, 0\ns_lshl_b32 s{T1}, s{RB}, 5")
    k.e(f"buffer_store_dword v54, v55, {srd(DBG)}, s{T1} offen sc1")
    k.e("L_nolead:")
    emit_now(k, dma_items(0))
    k.e("s_waitcnt lgkmcnt(0)")
    mk_srd(B1, 7168); mk_srd(KC, 2*MB); mk_srd(VC, 2*MB); mk_srd(WO, 4096*2048); mk_srd(W2, 3584*2048); mk_srd(OUT, 4*MB); mk_srd(B2, 2048)
    k.e(f"v_lshlrev_b32 v{VL16}, 4, v0\nv_lshlrev_b32 v{VFP8}, 7, v40\nv_and_b32 v{VFP4}, 3, v0\nv_lshlrev_b32 v{VFP4}, 10, v{VFP4}")
    k.e(f"s_lshl_b32 s{T1}, s{WAVE}, 2\ns_add_u32 s{T1}, s{T1}, {LDS_SCR}\nv_lshlrev_b32 v43, 4, v40\nv_add_u32 v52, s{T1}, v43\nv_add_u32 v43, {LDS_SCR}, v43")
    for i in range(4):
        k.wait_vm([("ln", i)])
        for d in range(4):
            r = RAW + 4*i + d; o = X + 8*i + 2*d
            k.e(f"v_lshlrev_b32 v{o}, 16, v{r}\nv_and_b32 v{o+1}, 0xffff0000, v{r}")
    A_, B_, MEAN = 56, 51, 53
    k.e(f"v_add_f32 v{A_}, v{X}, v{X+1}\nv_add_f32 v{B_}, v{X+2}, v{X+3}")
    for i in range(4, 32, 2): k.e(f"v_add_f32 v{A_}, v{A_}, v{X+i}\nv_add_f32 v{B_}, v{B_}, v{X+i+1}")
    def allsum(off):
        k.e(f"v_add_f32 v{A_}, v{A_}, v{B_}")
        k.e(f"v_add_f32_dpp v{A_}, v{A_}, v{A_} row_ror:8 row_mask:0xf bank_mask:0xf")
        reduce4(A_, B_, "v_add_f32")
        k.e(f"ds_write_b32 v52, v{A_} offset:{off}\ns_waitcnt lgkmcnt(0)\ns_barrier")
        k.e(f"ds_read_b128 v[44:47], v43 offset:{off}\ns_waitcnt lgkmcnt(0)")
        k.e(f"v_add_f32 v44, v44, v45\nv_add_f32 v46, v46, v47\nv_add_f32 v{A_}, v44, v46\nv_mul_f32 v{A_}, {f32(1/1024)}, v{A_}")
    allsum(0)
    k.e(f"v_mov_b32 v{MEAN}, v{A_}\nv_mov_b32 v{A_}, 0\nv_mov_b32 v{B_}, 0")
    for i in range(0, 32, 2):
        k.e(f"v_sub_f32 v48, v{X+i}, v{MEAN}\nv_sub_f32 v49, v{X+i+1}, v{MEAN}\nv_fmac_f32 v{A_}, v48, v48\nv_fmac_f32 v{B_}, v49, v49")
    allsum(128)
    round_bf16(MEAN, MEAN); round_bf16(A_, A_)
    k.e(f"v_add_f32 v{A_}, {f32(1e-5)}, v{A_}"); round_bf16(A_, A_)
    k.e(f"v_sqrt_f32 v{A_}, v{A_}"); round_bf16(A_, A_)
    k.e(f"v_rcp_f32 v{A_}, v{A_}")
    k.e(f"s_lshl_b32 s{T0}, s{RB}, 2\ns_add_u32 s{T0}, s{T0}, s{R}\ns_lshl_b32 s{T0}, s{T0}, 17\ns_lshl_b32 s{T1}, s{WAVE}, 15\ns_add_u32 s{T0}, s{T0}, s{T1}")
    k.e(f"s_bfe_u32 s{T1}, s{J}, 0x20001\ns_lshl_b32 s{T1}, s{T1}, 10\ns_add_u32 s{T0}, s{T0}, s{T1}\ns_lshl_b32 s{T1}, s{T5}, 7\ns_add_u32 s{T0}, s{T0}, s{T1}")
    k.e("v_lshrrev_b32 v50, 2, v41\nv_and_b32 v51, 3, v41\nv_lshlrev_b32 v50, 12, v50\nv_lshl_add_u32 v50, v51, 8, v50\nv_lshl_add_u32 v50, v40, 4, v50")
    for i in range(4):
        for d in range(4):
            o = X + 8*i + 2*d; r = RAW + 4*i + d
            k.e(f"v_sub_f32 v48, v{o}, v{MEAN}\nv_sub_f32 v49, v{o+1}, v{MEAN}\nv_cvt_pk_bf16_f32 v48, v48, v49")
            k.e(f"v_and_b32 v49, 0xffff0000, v48\nv_lshlrev_b32 v48, 16, v48\nv_mul_f32 v48, v48, v{A_}\nv_mul_f32 v49, v49, v{A_}")
            k.e(f"v_cvt_pk_bf16_f32 v{r}, v48, v49")
        k.vmem(f"buffer_store_dwordx4 {v(RAW+4*i,4)}, v50, {srd(WS)}, s{T0} offen sc1", "lnst")
        if i < 3: k.e(f"s_add_u32 s{T0}, s{T0}, 8192")
    stamp()
    k.e(f"v_mov_b32 v55, 0\ns_lshl_b32 s{T4}, s{RB}, 5")
    NLOAD = f"buffer_load_dword v54, v55, {srd(DBG)}, s{T4} offen sc1"
    k.vmem(NLOAD, "nonce")
    BI = 112
    k.e(f"v_lshrrev_b32 v44, 4, v0\nv_lshlrev_b32 v{VQ8}, 3, v44\nv_add_u32 v46, s{T3}, v{VQ8}")
    k.e(f"s_lshl_b32 s{T0}, s{T5}, 6\ns_xor_b32 s{T1}, s{T5}, 1\ns_mul_i32 s{T1}, s{T1}, 192")
    for i in range(6): k.vmem(f"buffer_load_dwordx2 {v(BI+2*i,2)}, v46, {srd(B1)}, s{T0} offen offset:{32*i}", "bias")
    for i in range(2): k.vmem(f"buffer_load_dwordx2 {v(BI+12+2*i,2)}, v46, {srd(B1)}, s{T1} offen offset:{32*i}", "bias")
    emit_now(k, dma_items(1))
    k.e("v_bfe_u32 v45, v0, 2, 2\nv_lshl_add_u32 v46, v44, 3, v45\nv_lshlrev_b32 v46, 8, v46\nv_and_b32 v47, 3, v0")
    k.e("v_and_b32 v48, 1, v44\nv_lshl_or_b32 v48, v48, 2, v45")
    k.e("v_lshl_add_u32 v49, v47, 3, v46\nv_lshlrev_b32 v51, 1, v48\nv_xor_b32 v51, v51, v47")
    k.e(f"s_lshl_b32 s{T0}, s{T5}, 1")
    for t in range(8):
        k.e(f"s_add_u32 s{T1}, s{T0}, {t}\ns_and_b32 s{T1}, s{T1}, 7")
        k.e(f"v_xor_b32 v50, s{T1}, v48\nv_lshl_add_u32 v{G1F+t}, v50, 5, v49\nv_add_u32 v{G1F+8+t}, 0x10000, v{G1F+t}")
    k.e(f"s_lshl_b32 s{T0}, s{T5}, 11\nv_add_u32 v{VLA}, s{T0}, v{VL16}\nv_xor_b32 v{VLB}, 2048, v{VLA}")
    for t in range(4): k.e(f"v_xor_b32 v50, {4*t}, v51\nv_lshl_add_u32 v{G1Q+t}, v50, 4, v46\nv_add_u32 v{G1Q+4+t}, 0x10000, v{G1Q+t}")
    k.e("v_and_b32 v45, 15, v0\nv_lshlrev_b32 v46, 8, v45\nv_lshlrev_b32 v48, 1, v40\nv_xor_b32 v48, v48, v44")
    for t in range(4): k.e(f"v_xor_b32 v50, {4*t}, v48\nv_lshl_add_u32 v{WK+t}, v50, 4, v46\nv_add_u32 v{WK+4+t}, 0x10000, v{WK+t}")
    k.e("v_lshrrev_b32 v48, 2, v0\nv_lshlrev_b32 v46, 8, v48\nv_lshl_add_u32 v46, v47, 3, v46\nv_and_b32 v48, 7, v48")
    k.e(f"s_lshl_b32 s{T0}, s{R}, 1\ns_add_u32 s{T0}, s{T0}, 2")
    for t in range(8):
        k.e(f"s_add_u32 s{T1}, s{T0}, {t}\ns_and_b32 s{T1}, s{T1}, 7")
        k.e(f"v_xor_b32 v50, s{T1}, v48\nv_lshl_add_u32 v{WV+t}, v50, 5, v46\nv_add_u32 v{WV+8+t}, 0x10000, v{WV+t}")
    k.e(f"s_lshl_b32 s{T0}, s{R}, 19\ns_add_u32 s{T0}, s{T0}, s{M0KV}\ns_add_u32 s{T0}, s{T0}, {1536*256}")
    k.e(f"s_lshl_b32 s{T1}, s{WAVE}, 16\ns_lshl_b32 s{T2}, s{FB}, 8\ns_add_u32 s{T1}, s{T1}, s{T2}")
    for h in range(2):
        k.e(f"v_or_b32 v47, {4*h}, v44\nv_lshlrev_b32 v47, 1, v47\nv_xor_b32 v47, v45, v47\nv_lshlrev_b32 v47, 4, v47")
        k.e(f"v_lshl_add_u32 v48, v44, 8, v47\nv_add_u32 v{VKV+h}, s{T0}, v48\nv_subrev_u32 v{VKV+2+h}, 16384, v{VKV+h}")
        k.e(f"v_lshl_add_u32 v48, v44, 11, v47\nv_add_u32 v48, s{T1}, v48")
        for i in range(h, 8, 2): k.e(f"v_add_u32 v{VP3+i}, {i*8192 - (i%4)*1024}, v48")
    k.e(f"s_mov_b32 s{SKV}, 0\ns_lshl_b32 s{SW3}, s{J}, 18")
    k.e(f"s_lshl_b32 s{SX}, s{TOK64}, 17")
    k.e(f"s_lshl_b32 s{ST1}, s2, 2\ns_add_u32 s{ST1}, s{ST1}, s{WAVE}\ns_mul_i32 s{ST2}, s{ST1}, 7168\ns_lshl_b32 s{ST1}, s{ST1}, 13\nv_lshlrev_b32 v{VTCH}, 3, v0")
    k.e(f"v_or_b32 v47, s{WAVE}, v0\nv_cmp_eq_u32 vcc, 0, v47\nv_bfrev_b32 v48, 1\nv_cndmask_b32 v{VFST}, v48, 0, vcc")
    k.e(f"s_lshl_b32 s{T0}, s{WAVE}, 10\ns_add_u32 s{T0}, s{T0}, s{FLOWN}")
    k.e(f"s_lshl_b32 s{T1}, s{J}, 7\ns_add_u32 s{FLOWN}, s{FLOWN}, s{T1}")
    k.wait_vm(["lnst", "nonce"])
    k.e(f"s_mov_b32 s3, {SPIN_LIMIT}")
    k.e(f"L_nonce:\nv_readfirstlane_b32 s{NONCE}, v54\ns_cmp_lg_u32 s{NONCE}, 0\ns_cbranch_scc1 L_nonce_ok")
    k.e(f"{NLOAD}\ns_waitcnt vmcnt(0)\ns_sub_u32 s3, s3, 1\ns_cmp_lg_u32 s3, 0\ns_cbranch_scc1 L_nonce")
    k.e("L_nonce_ok:\ns_barrier")
    k.e(f"s_add_u32 s{T1}, s{NONCE}, 1\nv_mov_b32 v{VFVAL}, s{T1}")
    k.vmem(FLAG_STORE, "flag")
    stamp()
    k.vmem(poll_load(VFP8, T0), ("poll", "xn"))
    k.wait_vm(["bias"])
    for ft in range(8):
        b = facc(ft, 0)
        k.e(f"v_lshlrev_b32 v{b}, 16, v{BI+2*ft}\nv_and_b32 v{b+1}, 0xffff0000, v{BI+2*ft}")
        k.e(f"v_lshlrev_b32 v{b+2}, 16, v{BI+1+2*ft}\nv_and_b32 v{b+3}, 0xffff0000, v{BI+1+2*ft}")
        for tt in range(1, 4 if ft < 6 else 2):
            for r in range(4): k.e(f"v_mov_b32 v{b+4*tt+r}, v{b+r}")
    k.wait_vm([("poll", "xn")])
    for t in poll_check("xn", VFP8, T0, T1, 1): k.e(t)
    stamp()
    for kap in range(XD): emit_now(k, x_items(kap))

def build_frags():
    frags = []
    def add(st, reads): frags.append(dict(stage=st, reads=reads))
    for st in range(16):
        w = 1 if (st % 4) >= 2 else 0
        for ks in range(2):
            for ft in range(16):
                if ft < 8: reg, off = G1Q + 4*w + ft//2, (st % 2)*32768 + ks*8192 + (ft % 2)*8
                else: reg, off = G1F + 8*w + ft - 8, (st % 2)*32768 + 16384 + ks*8192
                add(st, lambda r, reg=reg, off=off: [f"ds_read_b64_tr_b16 {a(r,2)}, v{reg} offset:{off}", f"ds_read_b64_tr_b16 {a(r+2,2)}, v{reg} offset:{off+1024}"])
    def trw(st, base, t):
        w = 1 if (st % 4) >= 2 else 0; off = (st % 2)*32768 + base
        add(st, lambda r, reg=WV + 8*w + t, off=off: [f"ds_read_b64_tr_b16 {a(r,2)}, v{reg} offset:{off}", f"ds_read_b64_tr_b16 {a(r+2,2)}, v{reg} offset:{off+4096}"])
    for b in range(32):
        st = 16 + b//4; w = 1 if (st % 4) >= 2 else 0
        isk = b == 0 or (b % 2 == 1 and b < 31)
        for n in range(8):
            if isk:
                kt, ks = divmod(n, 4)
                add(st, lambda r, reg=WK + 4*w + ks, off=(st % 2)*32768 + (b % 4)*8192 + kt*4096: [f"ds_read_b128 {a(r,4)}, v{reg} offset:{off}"])
            else: trw(st, (b % 4)*8192, n)
    for m in range(4):
        for ft in range(8): trw(24, m*8192, ft)
    t0 = NACT - TAILK
    order = [(n, ft) for n in range(t0) for ft in range(8)]
    order += [(n, ft) for n in range(t0, NACT - 4) for ft in range(6)]
    order += [(n, ft) for p in range(3) for n in range(NACT - 4, NACT) for ft in (2*p, 2*p+1)]
    order += [(n, ft) for n in range(t0, NACT) for ft in (6, 7)]
    for n, ft in order: trw(25 + n//4, (n % 4)*8192, ft)
    return frags, order

def main_body():
    frags, order = build_frags()
    S = Sched(k, frags, AR)
    bar_hooks = {}
    def mk_after(st):
        def f():
            S.q['d'].extend(dma_items(st + 2))
            for h in bar_hooks.get(st, []): h()
        return f
    first_of = {}
    for i, fr in enumerate(frags):
        if fr["first"]:
            first_of[fr["stage"]] = fr
            if fr["stage"] > 0: fr["after_bar"] = mk_after(fr["stage"])
    def flag_tasks(phase, sref):
        return [Task(f"s_add_u32 s{sref}, s{NONCE}, {phase}"), Task(f"v_mov_b32 v{VFVAL}, s{sref}"), Task(FLAG_STORE, tag="flag")]
    def poll_tasks(name, voff, soff, sref, phase, then):
        c = poll_check(name, voff, soff, sref, phase)
        def fin():
            k.e(c[2]); then()
        return [Task(fn=lambda: k.wait_vm([("poll", name)])), Task(c[0]), Task(c[1]), Task(fn=fin)]
    k.region = "gemm1"
    G1VQ = {0: 'd', 1: 'x', 3: 'd', 4: 'x', 6: 'p', 7: 'd', 8: 'x', 10: 'd', 11: 'x', 13: 'd'}
    S.q['d'].extend(dma_items(2))
    S.prime(S.look)
    stamp()
    for kap in range(32):
        S.q['x'].extend(x_items(kap + XD))
        if TOUCH and kap < 30:
            sr, so = (WO, ST1) if kap < 16 else (W2, ST2)
            S.q['p'].append((None, f"buffer_load_dword v{VDUM}, v{VTCH}, {srd(sr)}, s{so} offen", "pf", f"s_add_u32 s{so}, s{so}, 512"))
        if CPF & 2 and kap == 30: S.q['p'].append((None, code_touch(VDUM), "pf", None))
        for ft in range(16):
            def mf(ar, ft=ft, kap=kap):
                out = []
                for tt in range(4 if ft < 14 else 2):
                    acc = a(QACC + (ft*4+tt)*4, 4) if ft < 8 else v(facc(ft-8, tt), 4)
                    out.append(f"{MFMA} {acc}, {a(ar,4)}, {xreg(kap, tt)}, {'0' if kap == 0 and ft < 8 else acc}")
                return out
            pre = (lambda kap=kap: k.wait_vm([("x", kap)])) if ft == 0 else None
            S.group(mf, pre=pre, nextpre=1 if ft == 15 else 0, vq=G1VQ.get(ft))
    S.flush_side()
    stamp()
    k.region = "gelu"
    CQ, CG, C1 = 6, 8, 10
    qs = (128 ** -0.5) * math.log2(math.e)
    k.e(f"s_mov_b32 s{CQ}, {f32(qs)}\ns_mov_b32 s{CQ+1}, {f32(qs)}")
    if TOUCH: k.wait_vm(["pf"])
    T = VT
    for qt in range(4):
        for ks in range(4):
            for b in range(2):
                src = QACC + ((2*ks+b)*4 + qt)*4
                for r in range(4): k.e(f"v_accvgpr_read_b32 v{T+4*b+r}, a{src+r}")
            for p in range(4): k.e(f"v_pk_mul_f32 {v(T+2*p,2)}, {v(T+2*p,2)}, s[{CQ}:{CQ+1}]")
            for p in range(4): k.e(f"v_cvt_pk_bf16_f32 v{QF+(qt*4+ks)*4+p}, v{T+2*p}, v{T+2*p+1}")
    kk = 2*math.sqrt(2/math.pi)*math.log2(math.e)
    k.e(f"s_mov_b32 s{CG}, {f32(-0.044715*kk)}\ns_mov_b32 s{CG+1}, {f32(-0.044715*kk)}")
    k.e(f"v_mov_b32 v{T+8}, {f32(-kk)}\nv_mov_b32 v{T+9}, {f32(-kk)}")
    k.e(f"s_mov_b32 s{C1}, 1.0\ns_mov_b32 s{C1+1}, 1.0")
    k.e(f"s_mul_i32 s{SX}, s{TOK64}, 458752\ns_add_u32 s{SX}, s{SX}, {H_OFF}")
    k.e(f"s_lshr_b32 s{T1}, s{J}, 1\ns_mul_i32 s{T1}, s{T1}, {7*4096}\ns_add_u32 s{T0}, s{SX}, s{T1}")
    k.e(f"s_and_b32 s{T5}, s{J}, 1\ns_add_u32 s{T2}, s{T0}, {3*4096}")
    k.e(f"s_lshl_b32 s{T1}, s{T5}, 14\ns_add_u32 s{T0}, s{T0}, s{T1}")
    k.e(f"s_mul_i32 s{T1}, s{R}, {28*4096}\ns_add_u32 s{SX}, s{SX}, s{T1}")
    k.e(f"s_lshl_b32 s{SXO}, s{TOK64}, 19\ns_add_u32 s{SXO}, s{SXO}, {O_OFF}\ns_lshl_b32 s{T1}, s{J}, 14\ns_add_u32 s{SOB}, s{SXO}, s{T1}")
    k.e(f"s_lshl_b32 s{T1}, s{R}, 17\ns_add_u32 s{SXO}, s{SXO}, s{T1}")
    def gelu4(x, dst, t):
        for p in range(2): k.e(f"v_pk_mul_f32 {v(t+2*p,2)}, {v(x+2*p,2)}, {v(x+2*p,2)}")
        for p in range(2): k.e(f"v_pk_fma_f32 {v(t+2*p,2)}, {v(t+2*p,2)}, s[{CG}:{CG+1}], {v(T+8,2)}")
        for p in range(2): k.e(f"v_pk_mul_f32 {v(t+2*p,2)}, {v(t+2*p,2)}, {v(x+2*p,2)}")
        for r in range(4): k.e(f"v_exp_f32 v{t+r}, v{t+r}")
        for p in range(2): k.e(f"v_pk_add_f32 {v(t+2*p,2)}, {v(t+2*p,2)}, s[{C1}:{C1+1}]")
        for r in range(4): k.e(f"v_rcp_f32 v{t+r}, v{t+r}")
        for p in range(2): k.e(f"v_pk_mul_f32 {v(t+2*p,2)}, {v(t+2*p,2)}, {v(x+2*p,2)}")
        for p in range(2): k.e(f"v_cvt_pk_bf16_f32 v{dst+p}, v{t+2*p}, v{t+2*p+1}")
    n = 0
    for m in range(4):
        for tt in range(4 if m < 3 else 2):
            d = 240 + (n % 4)*4; n += 1
            gelu4(facc(2*m, tt), d, T); gelu4(facc(2*m+1, tt), d+2, T+4)
            k.vmem(f"buffer_store_dwordx4 {v(d,4)}, {vl(tt)}, {srd(WS)}, s{T0 if m < 3 else T2} offen offset:{to(tt)} sc1", "hst")
        if m < 2: k.e(f"s_add_u32 s{T0}, s{T0}, 4096")
    FLG8, FLG4 = 6, 7
    k.e(f"s_lshl_b32 s{T0}, s{RB}, 12\ns_add_u32 s{T0}, s{T0}, {FL_OFF}\ns_lshl_b32 s{T1}, s{R}, 10\ns_add_u32 s{FLG8}, s{T0}, s{T1}\ns_lshl_b32 s{T1}, s{FB}, 7\ns_add_u32 s{FLG4}, s{T0}, s{T1}")
    OST = 8
    PST, PLD = 66, 16
    k.e(f"s_lshl_b32 s{T0}, s{RB}, 3\ns_add_u32 s{T0}, s{T0}, s{FB}\ns_lshl_b32 s{T0}, s{T0}, 18\ns_add_u32 s{T0}, s{T0}, s{M0W}\ns_add_u32 s{T0}, s{T0}, {PF_OFF}")
    for m in range(4):
        k.e(f"s_add_u32 s{T1}, s{R}, {m+1}\ns_and_b32 s{T1}, s{T1}, 3\ns_lshl_b32 s{T2}, s{T1}, 12\ns_add_u32 s{OST+m}, s{SOB}, s{T2}")
        if m < 3:
            k.e(f"s_lshl_b32 s{T2}, s{T1}, 16\ns_lshl_b32 s{T3}, s{R}, 14\ns_add_u32 s{T2}, s{T2}, s{T3}\ns_add_u32 s{PST+m}, s{T0}, s{T2}")
            k.e(f"s_lshl_b32 s{T2}, s{R}, 16\ns_lshl_b32 s{T3}, s{T1}, 14\ns_add_u32 s{T2}, s{T2}, s{T3}\ns_add_u32 s{PLD+m}, s{T0}, s{T2}")
    k.e(f"s_lshl_b32 s{SWB}, s{R}, 21\ns_sub_u32 s{M0O}, s{WAVE}, s{R}\ns_add_u32 s{M0O}, s{M0O}, 3\ns_and_b32 s{M0O}, s{M0O}, 3\ns_lshl_b32 s{M0O}, s{M0O}, 13")
    COL, OOF = M0W, DBG
    k.e(f"s_lshl_b32 s{COL}, s{FB}, 8\ns_lshl_b32 s{T0}, s{R}, 6\ns_add_u32 s{COL}, s{COL}, s{T0}")
    k.e(f"s_lshl_b32 s{T0}, s{TOK64}, 17\ns_add_u32 s{T0}, s{T0}, s{COL}\ns_lshl_b32 s{T1}, s{T5}, 16\ns_add_u32 s{OOF}, s{T0}, s{T1}")
    for tt in range(1, 4): k.e(f"s_xor_b32 s{OOF+tt}, s{OOF}, {tt*32768}")
    k.region = "attn"
    stamp()
    first_of[18]["also"] = ["hst"]
    bar_hooks[18] = [lambda: S.tasks.extend(flag_tasks(2, T4))]
    for r in range(4): k.e(f"v_mov_b32 v{ONES+r}, 0x3f803f80")
    def sreg(u, qt, kt): return SB + (u % 2)*32 + qt*8 + kt*4
    cnt = [0]
    def aq():
        cnt[0] += 1
        return ['d', 'x'] if cnt[0] % 2 == 0 else None
    def qk_groups(u):
        for kt in range(2):
            for ks in range(4):
                def mf(ar, kt=kt, ks=ks):
                    out = []
                    for qt in range(4):
                        d = v(sreg(u, qt, kt), 4)
                        c = d if ks > 0 else ("0" if u < 2 else v(NEGM + qt*4, 4))
                        out.append(f"{MFMA} {d}, {a(ar,4)}, {v(QF+(qt*4+ks)*4,4)}, {c}")
                    return out
                S.group(mf, vq=aq(), gv=3 if cnt[0] % 2 else 2, rdsplit=False)
    def soft_tasks(u):
        tk = []
        def t(x): tk.append(Task(x, mark=("s", u)))
        if u == 0:
            for qt in range(4):
                b = sreg(0, qt, 0); m = NEGM + qt*4
                t(f"v_max3_f32 v{m}, v{b}, v{b+1}, v{b+2}"); t(f"v_max3_f32 v{m}, v{m}, v{b+3}, v{b+4}")
                t(f"v_max3_f32 v{m}, v{m}, v{b+5}, v{b+6}"); t(f"v_max_f32 v{m}, v{m}, v{b+7}")
            for sw in ("32", "16"):
                for qt in range(4): t(f"v_mov_b32 v{NEGM+qt*4+1}, v{NEGM+qt*4}")
                for qt in range(4): t(f"v_permlane{sw}_swap_b32 v{NEGM+qt*4}, v{NEGM+qt*4+1}")
                for qt in range(4): t(f"v_max_f32 v{NEGM+qt*4}, v{NEGM+qt*4}, v{NEGM+qt*4+1}")
            for qt in range(4):
                for r in range(3, -1, -1): t(f"v_sub_f32 v{NEGM+qt*4+r}, 0, v{NEGM+qt*4}")
        for qt in range(4):
            b = sreg(u, qt, 0)
            for p in range(4):
                for r in (2*p, 2*p+1):
                    if u < 2: t(f"v_add_f32 v{b+r}, v{b+r}, v{NEGM+qt*4}")
                    t(f"v_exp_f32 v{b+r}, v{b+r}")
                t(f"v_cvt_pk_bf16_f32 v{b+p}, v{b+2*p}, v{b+2*p+1}")
        return tk
    def pv_groups(u):
        first = u == 0
        for dt in range(8):
            def mf(ar, dt=dt):
                return [f"{MFMA} {a(QACC + (dt*4+qt)*4, 4)}, {a(ar,4)}, {v(sreg(u, qt, 0),4)}, {'0' if first else a(QACC + (dt*4+qt)*4, 4)}" for qt in range(4)]
            S.group(mf, vq=aq(), gv=3 if cnt[0] % 2 else 2, rdsplit=False)
        S.group(lambda _: [f"{MFMA} {v(LACC+qt*4,4)}, {v(ONES,4)}, {v(sreg(u, qt, 0),4)}, {'0' if first else v(LACC+qt*4,4)}" for qt in range(4)], frag=False)
    HPOLL = opt('--hpoll', 9)
    qk_groups(0)
    S.tasks.extend(soft_tasks(0))
    for u in range(16):
        if CPF & 4 and u == 7: S.q['x'].append((None, code_touch(VCD), "cpf", None))
        if u == HPOLL: S.q['x'].append((None, poll_load(VFP8, FLG8), ("poll", "h"), None))
        if u + 1 < 16: qk_groups(u + 1)
        S.flush(("s", u))
        if u == HPOLL + 1:
            S.tasks.extend(poll_tasks("h", VFP8, FLG8, T4, 2, lambda: [S.q['x'].extend(act_items(n)) for n in range(6)]))
        if u + 1 < 16: S.tasks.extend(soft_tasks(u + 1))
        pv_groups(u)
    S.flush()
    stamp()
    k.region = "chk"
    k.e(f"s_mov_b32 s{T5}, 0")
    k.e("L_norm:")
    k.e("s_nop 7")
    k.e(f"v_add_f32 v{VT}, v{LACC}, v{LACC+4}\nv_add_f32 v{VT+1}, v{LACC+8}, v{LACC+12}\nv_add_f32 v{VT}, v{VT}, v{VT+1}")
    k.e(f"s_mov_b32 s{T0}, {f32(2.0**30)}\nv_cmp_nge_f32 vcc, s{T0}, v{VT}")
    k.e(f"s_cmp_lg_u32 s{T5}, 0\ns_cbranch_scc1 L_normok\ns_cbranch_vccnz L_slow\nL_normok:")
    k.region = "s2o"
    RCP, BIAS, SEL, VOUT = VKV, WK, WK, VKV
    for b in range(2): k.vmem(f"buffer_load_dwordx2 {v(BIAS+4+2*b,2)}, v{VQ8}, {srd(B2)}, s{COL} offen offset:{32*b}", "b2")
    for qt in range(4): k.e(f"v_rcp_f32 v{RCP+qt}, v{LACC+qt*4}")
    OP1, OP2 = opt('--op1', 16), opt('--op2', 36)
    OM = opt('--omode', 'sc1').replace('_', ' ').replace('plain', '')
    nm0 = S.nm
    for m in range(4):
        for qt in range(4):
            n = m*4 + qt
            t0 = VT + (n % 2)*8; d = OF + n*4; tk = []
            for b in range(2):
                src = QACC + ((2*m+b)*4+qt)*4
                for r in range(4): tk.append(f"v_accvgpr_read_b32 v{t0+4*b+r}, a{src+r}")
            if m == 0:
                pr = (RCP + qt) & ~1; hi = (RCP + qt) & 1
                for p in range(4): tk.append(f"v_pk_mul_f32 {v(t0+2*p,2)}, {v(t0+2*p,2)}, {v(pr,2)} op_sel:[0,{hi}] op_sel_hi:[1,{hi}]")
            else:
                for r in range(8): tk.append(f"v_mul_f32 v{t0+r}, v{t0+r}, v{RCP+qt}")
            for p in range(4): tk.append(f"v_cvt_pk_bf16_f32 v{d+p}, v{t0+2*p}, v{t0+2*p+1}")
            S.tasks.extend(Task(x, mark=("o", m)) for x in tk)
            S.tasks.append(Task(f"buffer_store_dwordx4 {v(d,4)}, {vl(qt)}, {srd(WS)}, s{OST+m} offen offset:{to(qt)} {OM}", tag="ost",
                                mark="olo" if m < 2 else None, after=nm0 + (OP1*n if n < 8 else OP1*8 + OP2*(n-8))))
    S.tasks.extend([Task(f"v_and_b32 v{VT}, 15, v0"), Task(f"v_lshlrev_b32 v{VT}, 11, v{VT}"), Task(f"v_lshl_add_u32 v{VOUT}, v{VQ8}, 1, v{VT}")])
    for tt in range(4): S.tasks.append(Task(f"buffer_load_dwordx4 {v(XRES+16+4*tt,4)}, v{VOUT}, {srd(XS)}, s{OOF+tt} offen", tag="xres"))
    for m in range(4):
        S.flush(("o", m))
        if m == 3:
            S.q['x'].extend(act_items(6))
            k.wait_vm(["b2"])
            S.tasks[:0] = [Task(x, mark="bias") for b in range(2) for p in range(2) for x in
                           (f"v_lshlrev_b32 v{BIAS+4*b+2*p}, 16, v{BIAS+4+2*b+p}", f"v_and_b32 v{BIAS+4*b+2*p+1}, 0xffff0000, v{BIAS+4+2*b+p}")]
        for ft in range(8):
            def mf(ar, m=m, ft=ft):
                return [f"{MFMA} {v(SACC+(ft*4+tt)*4,4)}, {a(ar,4)}, {v(OF+(m*4+tt)*4,4)}, {'0' if m == 0 else v(SACC+(ft*4+tt)*4,4)}" for tt in range(4)]
            S.group(mf, vq=['d', 'x'] if ft % 2 == 0 else None, nextpre=1 if (m, ft) == (3, 7) else 0)
    stamp()
    k.region = "f2"
    OBAR, OPOLL, FBAR, FPOLL, FSUM = opt('--obar', 28), opt('--opoll', 18), opt('--fbar', 35), opt('--fpoll', 43), opt('--fsum', 47)
    FP = opt('--fp', 28); SFLAG = opt('--sflag', 4); XUN = opt('--xun', 22)
    first_of[OBAR]["also"] = ["ost"]
    bar_hooks[OBAR] = [lambda: S.tasks.extend(flag_tasks(3, T4))]
    first_of[FBAR]["also"] = ["pst"]
    bar_hooks[FBAR] = [lambda: S.tasks.extend(flag_tasks(4, T4))]
    gate = {"o": False, "f": False}
    pending = []
    def acc_of(n, ft, tt):
        if n >= 28: return v(SACC + (ft*4+tt)*4, 4)
        return a(QACC + (ft*4+tt)*4, 4) if ft < 6 else v(FOWN + ((ft-6)*4+tt)*4, 4)
    def release(g):
        gate[g] = True
        for it in pending: S.q['x'].extend(it)
        del pending[:]
    PIN = 48
    def xres(b, tt): return XRES + tt*8 + b*4
    def x_unpack():
        tk = [Task(fn=lambda: k.wait_vm(["xres"]))]
        for tt in range(4):
            d = XRES + 16 + 4*tt
            for sw in ("16", "32"): tk += [Task(f"v_permlane{sw}_swap_b32 v{d}, v{d+2}"), Task(f"v_permlane{sw}_swap_b32 v{d+1}, v{d+3}")]
            for p in range(4): tk += [Task(f"v_lshlrev_b32 v{XRES+8*tt+2*p}, 16, v{d+p}"), Task(f"v_and_b32 v{XRES+8*tt+2*p+1}, 0xffff0000, v{d+p}")]
        tk += [Task(x) for x in (f"v_and_b32 v{VT}, 15, v0", f"v_lshrrev_b32 v{VT+1}, 1, v{VQ8}", f"v_sub_u32 v{VT}, v{VT}, v{VT+1}",
               f"v_mov_b32 v{SEL}, 0", f"v_mov_b32 v{SEL+1}, 0", f"v_mov_b32 v{SEL+4}, 0", f"v_mov_b32 v{SEL+5}, 0", f"v_mov_b32 v{VT+1}, 0x3f80", f"v_mov_b32 v{VT+2}, 0x3f800000")]
        for p in range(2):
            tk += [Task(x) for x in (f"v_cmp_eq_u32 vcc, {2*p}, v{VT}", f"v_cndmask_b32 v{SEL+2+p}, 0, v{VT+1}, vcc", f"v_cmp_eq_u32 vcc, {2*p+1}, v{VT}", f"v_cndmask_b32 v{SEL+2+p}, v{SEL+2+p}, v{VT+2}, vcc")]
        S.tasks.extend(tk)
    def f_publish():
        n = 0
        for m in range(3):
            for tt in range(4):
                t0 = VT + (n % 2)*8; af = S.nm + 4 + FP*n; n += 1
                for b in range(2):
                    src = QACC + ((2*m+b)*4+tt)*4
                    for r in range(4): S.tasks.append(Task(f"v_accvgpr_read_b32 v{t0+4*b+r}, a{src+r}", mark="pf"))
                for p in range(4): S.tasks.append(Task(f"v_cvt_pk_bf16_f32 v{t0+p}, v{t0+2*p}, v{t0+2*p+1}"))
                S.tasks.append(Task(f"buffer_store_dwordx4 {v(t0,4)}, v{VL16}, {srd(WS)}, s{PST+m} offen offset:{tt*1024} sc1", tag="pst", after=af))
        for m in range(3): S.tasks.append(Task(f"s_add_u32 s{PST+m}, s{PST+m}, {PS_OFF-PF_OFF}"))
    def f_gather():
        for i in range(3):
            for tt in range(4): S.tasks.append(Task(f"buffer_load_dwordx4 {a(PIN+(i*4+tt)*4,4)}, v{VL16}, {srd(WS)}, s{PLD+i} offen offset:{tt*1024} sc1", tag="fin"))
            S.tasks.append(Task(f"s_add_u32 s{PLD+i}, s{PLD+i}, {PS_OFF-PF_OFF}"))
    def f_finish():
        assert not any(t.tag == "fin" for t in S.tasks) and "fin" in k.vm
        for i in range(3):
            for h in range(2):
                S.group(lambda _, i=i, h=h: [f"{MFMA} {v(FOWN+(b*4+tt)*4,4)}, {v(SEL+2-2*b,4)}, {a(PIN+(i*4+tt)*4,4)}, {v(FOWN+(b*4+tt)*4,4)}" for tt in (2*h, 2*h+1) for b in range(2)],
                        frag=False, pre=(lambda: k.wait_vm(["fin"])) if i == h == 0 else None, vq=['x', 'd'])
        release("f")
        tk = []
        for c in range(8):
            g = FOWN + 4*c; t = VT + 4*(c % 4)
            for r in range(4): tk.append(Task(f"v_mul_f32 v{t+r}, {f32(-math.log2(math.e))}, v{g+r}"))
            for r in range(4): tk.append(Task(f"v_exp_f32 v{t+r}, v{t+r}"))
            for r in range(4): tk.append(Task(f"v_add_f32 v{t+r}, 1.0, v{t+r}"))
            for r in range(4): tk.append(Task(f"v_rcp_f32 v{t+r}, v{t+r}"))
            for r in range(4): tk.append(Task(f"v_mul_f32 v{g+r}, v{g+r}, v{t+r}"))
        S.tasks.extend(tk)
    def s_publish(m):
        tk = []
        for tt in range(4):
            d = SACC + ((2*m)*4+tt)*4; e_ = SACC + ((2*m+1)*4+tt)*4
            tk += [Task(f"v_cvt_pk_bf16_f32 v{d}, v{d}, v{d+1}"), Task(f"v_cvt_pk_bf16_f32 v{d+1}, v{d+2}, v{d+3}"),
                   Task(f"v_cvt_pk_bf16_f32 v{d+2}, v{e_}, v{e_+1}"), Task(f"v_cvt_pk_bf16_f32 v{d+3}, v{e_+2}, v{e_+3}"),
                   Task(f"buffer_store_dwordx4 {v(d,4)}, v{VL16}, {srd(WS)}, s{PST+m} offen offset:{tt*1024} sc1", tag="pst", mark="ps")]
        i = max([j + 1 for j, t in enumerate(S.tasks) if t.mark == "ps"], default=0)
        S.tasks[i:i] = tk
    seen = set()
    gp = (NACT - TAILK)*8 + (TAILK - 4)*6
    for gi, (n, ft) in enumerate(order):
        new = n not in seen
        if gi % 32 == 0: stamp('p3a')
        if gi >= 224 and gi % 16 == 0: stamp('p3b')
        if gi >= 320 and gi % 16 == 0: stamp('p3c')
        if gi < 224 and gi % 16 == 0: stamp('p3d')
        if (n, ft) == (0, 6): S.flush("bias"); S.flush("olo")
        if new:
            seen.add(n)
            if n == 28:
                k.region = "s2"; stamp()
                f_publish()
            if CPF & 8 and n == 16: S.q['x'].append((None, code_touch(VCD), "cpf", None))
            if n == XUN: x_unpack()
            if n == OPOLL: S.q['x'].append((None, poll_load(VFP8, FLG8), ("poll", "o"), None))
            if n == OPOLL + 2: S.tasks.extend(poll_tasks("o", VFP8, FLG8, T4, 3, lambda: release("o")))
            if n == FPOLL: S.q['x'].insert(0, (None, poll_load(VFP4, FLG4), ("poll", "pf"), None))
            if n == FPOLL + 1: S.tasks.extend(poll_tasks("pf", VFP4, FLG4, T4, 4, f_gather))
            if n == FSUM: f_finish()
            if n + AD == NACT - 6: S.flush("pf")
            it = act_items(n + AD)
            if (n + AD >= 28 and not gate["o"]) or (n + AD >= NACT - 3 and not gate["f"]): pending.append(it)
            else: S.q['x'].extend(it)
        if gi > gp and (gi - gp) % 8 == 0 and gi <= gp + 24: s_publish((gi - gp)//8 - 1)
        if gi == len(order) - SFLAG:
            S.flush("ps")
            S.tasks[:0] = [Task(fn=lambda: k.wait_vm(["pst"])), Task(fn=lambda: k.e("s_barrier"))] + flag_tasks(5, T4) + [Task(poll_load(VFP4, FLG4), tag=("poll", "ps"))]
        def mf(ar, n=n, ft=ft):
            c = lambda tt: acc_of(n, ft, tt) if n else ('0' if ft < 6 else v(BIAS + 4*(ft-6), 4))
            return [f"{MFMA} {acc_of(n, ft, tt)}, {a(ar,4)}, {actreg(n, tt)}, {c(tt)}" for tt in range(4)]
        def pre(n=n):
            assert not any(it[2] == ("act", n) for it in S.q['x']), n
            k.wait_vm([("act", n)])
        nxt = gi + 1 < len(order) and order[gi+1][0] not in seen and order[gi+1][0] != n
        S.group(mf, pre=pre if new else None, nextpre=1 if nxt else 0, vq=['x', 'd'] if gi % 2 == 0 else (['d', 'x'] if gi % 4 == 1 else (['x'] if len(S.q['x']) > 4 else None)))
    S.flush(); S.flush_side()
    stamp(); stamp('p3c')
    k.region = "final"
    SOWN = SACC + 96
    k.wait_vm([("poll", "ps")])
    for t in poll_check("ps", VFP4, FLG4, T4, 5): k.e(t)
    stamp()
    for i in range(3):
        for tt in range(4): k.vmem(f"buffer_load_dwordx4 {a((i*4+tt)*4,4)}, v{VL16}, {srd(WS)}, s{PLD+i} offen offset:{tt*1024} sc1", ("sin", i))
    for i in range(3):
        k.wait_vm([("sin", i)])
        for tt in range(4):
            for b in range(2):
                d = v(SOWN + (b*4+tt)*4, 4)
                k.e(f"{MFMA} {d}, {v(SEL + 2 - 2*b, 4)}, {a((i*4+tt)*4,4)}, {d}")
    stamp()
    for tt in range(4):
        d = 64 + tt*4
        for b in range(2):
            for p in range(2):
                o = (b*4+tt)*4 + 2*p
                k.e(f"v_pk_fma_f32 {v(SOWN+o,2)}, {v(SOWN+o,2)}, {v(FOWN+o,2)}, {v(xres(b, tt)+2*p,2)}")
        for b in range(2):
            for p in range(2):
                o = SOWN + (b*4+tt)*4 + 2*p
                k.e(f"v_cvt_pk_bf16_f32 v{d+2*b+p}, v{o}, v{o+1}")
        k.e(f"v_permlane32_swap_b32 v{d}, v{d+2}\nv_permlane32_swap_b32 v{d+1}, v{d+3}")
        k.e(f"v_permlane16_swap_b32 v{d}, v{d+2}\nv_permlane16_swap_b32 v{d+1}, v{d+3}")
        k.e(f"buffer_store_dwordx4 {v(d,4)}, v{VOUT}, {srd(OUT)}, s{OOF+tt} offen")
    if STAMPS:
        k.e("s_waitcnt vmcnt(0)"); stamp()
        k.e(f"s_cmp_lg_u32 s{WAVE}, 0\ns_cbranch_scc1 L_end\ns_waitcnt lgkmcnt(0)")
        k.e(f"s_lshl_b32 s{T0}, s2, 6\ns_add_u32 s{T0}, s{T0}, {STAMP_OFF}\nv_mov_b32 v2, 0\ns_mov_b64 exec, 1")
        for n in range(nstamp[0]):
            k.e(f"v_mov_b32 v{4+n}, s{STB+2*n}\nbuffer_store_dword v{4+n}, v2, {srd(WS)}, s{T0} offen offset:{4*n}")
    k.e("L_end:\ns_endpgm")
    k.region = "slow"
    FR = 160
    k.e(f"L_slow:\ns_mov_b32 s{T5}, 1")
    k.e(f"s_lshl_b32 s{T0}, s{R}, 19\ns_add_u32 s{T0}, s{T0}, {1536*256}")
    k.e(f"v_and_b32 v40, 15, v0\nv_lshlrev_b32 v41, 8, v40\nv_lshl_add_u32 v41, v{VQ8}, 1, v41")
    k.e(f"v_lshlrev_b32 v42, 7, v{VQ8}\nv_lshl_add_u32 v42, v40, 1, v42")
    def loadk():
        k.e(f"s_lshl_b32 s{T2}, s{T1}, 13\ns_add_u32 s{T2}, s{T2}, s{T0}\ns_add_u32 s{T3}, s{T2}, 4096")
        for n in range(8): k.e(f"buffer_load_dwordx4 {v(FR+n*4,4)}, v41, {srd(KC)}, s{T2 + n//4} offen offset:{(n%4)*64}")
        k.e("s_waitcnt vmcnt(0)")
    def qk(cneg):
        for kt in range(2):
            for ks in range(4):
                for qt in range(4):
                    d = v(sreg(0, qt, kt), 4)
                    c = d if ks > 0 else (v(NEGM+qt*4, 4) if cneg else "0")
                    k.e(f"{MFMA} {d}, {v(FR+(kt*4+ks)*4,4)}, {v(QF+(qt*4+ks)*4,4)}, {c}")
    for qt in range(4): k.e(f"v_mov_b32 v{NEGM+qt*4}, 0xff800000")
    k.e(f"s_mov_b32 s{T1}, 0\nL_slow1:")
    loadk(); qk(False)
    for qt in range(4):
        b = sreg(0, qt, 0); m = NEGM + qt*4
        for p in range(4): k.e(f"v_max3_f32 v{m}, v{m}, v{b+2*p}, v{b+2*p+1}")
    k.e(f"s_add_u32 s{T1}, s{T1}, 1\ns_cmp_lt_u32 s{T1}, 16\ns_cbranch_scc1 L_slow1")
    for qt in range(4):
        reduce4(NEGM+qt*4, NEGM+qt*4+1, "v_max_f32")
        for r in range(3, -1, -1): k.e(f"v_sub_f32 v{NEGM+qt*4+r}, 0, v{NEGM+qt*4}")
    for i in range(128): k.e(f"v_accvgpr_write_b32 a{QACC+i}, 0")
    for i in range(16): k.e(f"v_mov_b32 v{LACC+i}, 0")
    k.e(f"s_mov_b32 s{T1}, 0\nL_slow2:")
    loadk(); qk(True)
    for qt in range(4):
        b = sreg(0, qt, 0)
        for r in range(8): k.e(f"v_exp_f32 v{b+r}, v{b+r}")
        for p in range(4): k.e(f"v_cvt_pk_bf16_f32 v{b+p}, v{b+2*p}, v{b+2*p+1}")
    for dt in range(8):
        k.e(f"s_lshl_b32 s3, s{R}, 1\ns_add_u32 s3, s3, {dt+2}\ns_and_b32 s3, s3, 7\ns_lshl_b32 s3, s3, 5\nv_add_u32 v43, s3, v42")
        for e_ in range(8):
            k.e(f"buffer_load_ushort v{44+e_}, v43, {srd(VC)}, s{T2 + e_//4} offen offset:{(e_%4)*256}")
        k.e("s_waitcnt vmcnt(0)")
        for p in range(4): k.e(f"v_lshl_or_b32 v{FR+dt*4+p}, v{45+2*p}, 16, v{44+2*p}")
    for dt in range(8):
        for qt in range(4):
            d = a(QACC + (dt*4+qt)*4, 4)
            k.e(f"{MFMA} {d}, {v(FR+dt*4,4)}, {v(sreg(0, qt, 0),4)}, {d}")
    for qt in range(4): k.e(f"{MFMA} {v(LACC+qt*4,4)}, {v(ONES,4)}, {v(sreg(0, qt, 0),4)}, {v(LACC+qt*4,4)}")
    k.e("s_nop 7")
    k.e(f"s_add_u32 s{T1}, s{T1}, 1\ns_cmp_lt_u32 s{T1}, 16\ns_cbranch_scc1 L_slow2")
    k.e("s_branch L_norm")
    emit_spins()
    k.e("L_code_end:")
    print("over:", S.over, "nops:", k.nopstat)

def main():
    out = sys.argv[1] if len(sys.argv) > 1 and sys.argv[1].endswith(".s") else f"cdna_kernels/{NAME}.s"
    start(); main_body()
    for p in check_hazards(k.L): print("HAZARD", p)
    txt = "; generated by dev/gen4.py\n"
    txt += f"; @launch grid=(256,1,1) block=(256,1,1) lds={LDS_SCR+256}\n"
    txt += '.amdgcn_target "amdgcn-amd-amdhsa--gfx950"\n.text\n' + k.text()
    txt += f""".section .rodata,"a"
.p2align 6
.amdhsa_kernel {NAME}_kernel
  .amdhsa_next_free_vgpr 512
  .amdhsa_next_free_sgpr 102
  .amdhsa_accum_offset 256
  .amdhsa_group_segment_fixed_size 0
  .amdhsa_kernarg_size 104
  .amdhsa_user_sgpr_count 2
  .amdhsa_user_sgpr_kernarg_segment_ptr 1
  .amdhsa_system_sgpr_workgroup_id_x 1
.end_amdhsa_kernel
"""
    open(out, "w").write(txt)
    print("wrote", out, len(txt), "bytes", len(k.L), "lines")
main()
```

```python
import sys, struct, math
from asm2 import K, Task, Sched, emit_now, v, a, s, check_hazards

NAME = "recurrent_scan__sliding_block_cached__dense_activation_gelu__prompt"
MB = 1 << 20
XN_OFF, FL_OFF, O_OFF, H_OFF, PF_OFF, PS_OFF, STAMP_OFF = 0, 4*MB, 8*MB, 24*MB, 40*MB, 56*MB, 80*MB
WS_BYTES = 256*MB
def opt(name, default):
    return type(default)(sys.argv[sys.argv.index(name)+1]) if name in sys.argv else default
STAMPS = '--stamps' in sys.argv
XD = opt('--xd', 4)
AD = opt('--ad', 7)
TOUCH = '--touch' in sys.argv
TS = opt('--ts', 6)
TU = opt('--tu', 3)
NT = '' if '--nont' in sys.argv else ' nt'
SPIN_LIMIT = 1 << 18
def f32(x): return "0x%08x" % struct.unpack("<I", struct.pack("<f", x))[0]
MFMA = "v_mfma_f32_16x16x32_bf16"
LDS_SCR = 131072

WQ, W1, WS, B1, KC, VC, WO, W2, XS, OUT, DBG, B2 = 4, 8, 12, 16, 20, 24, 28, 32, 36, 40, 44, 48
WAVE, RB, J, R, FB, TOK64, M0W, M0KV, M0P, SKV, SW3, SX, NONCE, FLOWN, SWQ, SW1, ST1, ST2 = range(52, 70)
T0, T1, T2, T3, T4, T5 = range(70, 76)
CB = 76
TW = 78
STB = 80
WL = opt('--wl', 0)
W0 = opt('--w0', 2)
CPF = opt('--cpf', 7)
def srd(n): return f"s[{n}:{n+3}]"
VP3 = 1
VKV = 9
VL16, VFP8, VFP4 = 13, 14, 15
VLA, VLB = 58, 59
WV, WK = 16, 32
VT = 40
VCD, VCODE = 56, 57
VFST, VFVAL, VPOLL, VQ8 = 60, 61, 62, 63
G1D, G1Q, G1F, VTCH, VDUM, VTW, VTS = 64, 72, 80, 96, 97, 98, 99
QF, FACC, SB, NEGM, ONES, LACC = 64, 128, 128, 192, 208, 212
SACC = 64
OF = 192
FOWN, XRES = 192, 224
TAILK = opt('--tailk', 14)
def vl(tt): return f"v{VLA if tt < 2 else VLB}"
def to(tt): return (tt & 1)*1024
QACC, AR, XR = 0, 128, 160

k = K()
nstamp = [0]
SSET = opt('--sset', 'main')
def stamp(which='main'):
    if STAMPS and (which == SSET or which == 'all') and nstamp[0] < 11:
        n = nstamp[0]; nstamp[0] += 1
        k.e(f"{'s_memtime' if '--cyc' in sys.argv else 's_memrealtime'} s[{STB+2*n}:{STB+2*n+1}]")
spins = []
def poll_load(voff, soff): return f"buffer_load_dword v{VPOLL}, v{voff}, {srd(WS)}, s{soff} offen sc1"
def poll_check(name, voff, soff, sref, phase):
    spins.append((name, voff, soff, sref, phase))
    return [f"v_subrev_u32 v{VPOLL}, s{sref}, v{VPOLL}", f"v_cmp_le_u32 vcc, {16-phase}, v{VPOLL}", f"s_cbranch_vccnz SPIN_{name}\nBACK_{name}:"]
def emit_spins():
    for name, voff, soff, sref, phase in spins:
        k.e(f"SPIN_{name}:\ns_mov_b32 s3, {SPIN_LIMIT}\nSPINL_{name}:")
        k.e(poll_load(voff, soff)); k.e("s_waitcnt vmcnt(0)")
        k.e(f"v_subrev_u32 v{VPOLL}, s{sref}, v{VPOLL}\nv_cmp_le_u32 vcc, {16-phase}, v{VPOLL}\ns_cbranch_vccz BACK_{name}")
        k.e(f"s_sub_u32 s3, s3, 1\ns_cmp_lg_u32 s3, 0\ns_cbranch_scc1 SPINL_{name}\ns_branch BACK_{name}")
FLAG_STORE = f"buffer_store_dword v{VFVAL}, v{VFST}, {srd(WS)}, s{FLOWN} offen sc1"

def code_touch(d): return f"global_load_dword v{d}, v{VCODE}, s[{CB}:{CB+1}]"
def w_touch(): return (None, f"global_load_dword v{VDUM}, v{VTW}, s[{TW}:{TW+1}]", "pf", f"v_add_u32 v{VTW}, v{VTS}, v{VTW}")
def reduce4(x, t, op):
    k.e(f"v_mov_b32 v{t}, v{x}\nv_permlane32_swap_b32 v{x}, v{t}\n{op} v{x}, v{x}, v{t}")
    k.e(f"v_mov_b32 v{t}, v{x}\nv_permlane16_swap_b32 v{x}, v{t}\n{op} v{x}, v{x}, v{t}")
def round_bf16(d, x):
    k.e(f"v_cvt_pk_bf16_f32 v{d}, v{x}, v{x}\nv_and_b32 v{d}, 0xffff0000, v{d}")
def mk_srd(d, nbytes):
    k.e(f"s_and_b32 s{d+1}, s{d+1}, 0xffff\ns_mov_b32 s{d+2}, {nbytes}\ns_mov_b32 s{d+3}, 0x20000")

def dma_items(st):
    it = []; slot = (st % 4)*32768
    if st < 16:
        for m in range(2):
            for i in range(4):
                it.append((f"s_add_u32 m0, s{M0W}, {slot + m*16384}" if i == 0 else None,
                           f"buffer_load_dwordx4 v{G1D+4*m+i}, {srd(W1 if m else WQ)}, s{SWQ+m} offen offset:{i*1024}{NT if st < opt('--ntst', 16) else ''} lds", ("dma", st),
                           f"s_add_u32 s{SWQ+m}, s{SWQ+m}, {64*(7168 if m else 8192)}" if i == 3 else None))
    elif st < 24:
        for bl in range(4):
            b = (st - 16)*4 + bl
            isk = b == 0 or (b % 2 == 1 and b < 31)
            for i in range(2):
                post = None
                if i == 1 and (isk or b == 30): post = f"s_add_u32 s{SKV}, s{SKV}, 8192"
                it.append((f"s_add_u32 m0, s{M0KV}, {slot + bl*8192}" if i == 0 else None,
                           f"buffer_load_dwordx4 v{VKV + (0 if isk else 2) + i}, {srd(KC if isk else VC)}, s{SKV} offen offset:{i*1024} lds", ("dma", st), post))
    elif st < 39:
        for i in range(8):
            post = None
            if i == 7:
                if st == 24: post = [f"s_mul_i32 s{SW3}, s{R}, {896*2048}"]
                elif st < 31: post = [f"s_add_u32 s{SW3}, s{SW3}, {128*2048}"]
                else:
                    post = [f"s_lshl_b32 s{SW3}, s{J}, 18"] if st == 31 else []
                    post += [f"s_add_u32 s{SW3}, s{SW3}, {128*2048}", f"s_and_b32 s{SW3}, s{SW3}, 0x1fffff", f"s_or_b32 s{SW3}, s{SW3}, s{SWB}"]
            it.append((f"s_add_u32 m0, s{M0O if st == 24 else M0P}, {slot + (i//4)*4096}" if i % 4 == 0 else None,
                       f"buffer_load_dwordx4 v{VP3+i}, {srd(W2 if 25 <= st < 32 else WO)}, s{SW3} offen offset:{(i%4)*1024}{' nt' if '--p3nt' in sys.argv else ''} lds", ("dma", st), post))
    return it
def xreg(kap, tt): return a(XR + (kap % 6)*16 + tt*4, 4)
def x_items(kap):
    if kap >= 32: return []
    return [(None, f"buffer_load_dwordx4 {xreg(kap, tt)}, {vl(tt)}, {srd(WS)}, s{SX} offen offset:{to(tt)} sc1", ("x", kap),
             f"s_add_u32 s{SX}, s{SX}, 4096" if tt == 3 else None) for tt in range(4)]
SXO, SOB, SWB, M0O = 4, 5, 69, 19
NACT = 56
RING = [XR + 16*i for i in range(6)] + [96, 112]
def actreg(n, tt):
    return a((RING[n % 8] if n < NACT - 6 else (n - (NACT - 6))*16) + tt*4, 4)
def act_items(n):
    if n >= NACT: return []
    post = [f"s_add_u32 s{SX}, s{SX}, 4096"]
    if n == 27: post = [f"s_add_u32 s{SX}, s{SOB}, 16384"]
    if n >= 27 and n % 4 == 3: post += [f"s_and_b32 s{SX}, s{SX}, 0x1ffff", f"s_or_b32 s{SX}, s{SX}, s{SXO}"]
    return [(None, f"buffer_load_dwordx4 {actreg(n, tt)}, {vl(tt)}, {srd(WS)}, s{SX} offen offset:{to(tt)} sc1", ("act", n), post if tt == 3 else None) for tt in range(4)]

def facc(ft, tt): return FACC + (ft*16 if ft < 7 else 104) + tt*4
def start():
    k.region = "start"
    k.e(f".globl {NAME}_kernel\n.p2align 8\n.type {NAME}_kernel,@function\n{NAME}_kernel:")
    k.e("s_cmp_lt_u32 s2, 256\ns_cbranch_scc1 L_go\ns_endpgm\nL_go:")
    stamp()
    k.e(f"s_getpc_b64 s[{CB}:{CB+1}]\nL_pc:")
    for d, off in ((XS, 0), (WQ, 24), (W1, 48), (WS, 96), (DBG, 88)):
        k.e(f"s_load_dwordx2 s[{d}:{d+1}], s[0:1], {off}")
    k.e(f"v_lshrrev_b32 v1, 6, v0\nv_and_b32 v0, 63, v0\nv_readfirstlane_b32 s{WAVE}, v1")
    k.e(f"s_and_b32 s{T0}, s2, 7\ns_lshr_b32 s{T1}, s2, 3")
    k.e(f"s_and_b32 s{RB}, s{T0}, 1\ns_lshl_b32 s{RB}, s{RB}, 2\ns_and_b32 s{T2}, s{T1}, 3\ns_add_u32 s{RB}, s{RB}, s{T2}")
    k.e(f"s_lshr_b32 s{R}, s{T0}, 1\ns_lshr_b32 s{FB}, s{T1}, 2\ns_lshl_b32 s{J}, s{R}, 3\ns_add_u32 s{J}, s{J}, s{FB}")
    k.e(f"s_lshl_b32 s{TOK64}, s{RB}, 2\ns_add_u32 s{TOK64}, s{TOK64}, s{WAVE}")
    k.e(f"s_lshl_b32 s{M0W}, s{WAVE}, 12\ns_lshl_b32 s{M0KV}, s{WAVE}, 11\ns_lshl_b32 s{M0P}, s{WAVE}, 13")
    k.e(f"v_and_b32 v40, 7, v0\nv_lshrrev_b32 v41, 3, v0\nv_lshlrev_b32 v42, 11, v40\nv_lshl_add_u32 v42, v41, 4, v42")
    k.e(f"s_lshl_b32 s{T0}, s{RB}, 19\ns_lshl_b32 s{T1}, s{J}, 14\ns_add_u32 s{T0}, s{T0}, s{T1}\ns_lshl_b32 s{T1}, s{WAVE}, 9\ns_add_u32 s{T0}, s{T0}, s{T1}")
    k.e("s_waitcnt lgkmcnt(0)")
    mk_srd(XS, 4*MB)
    RAW, X = 128, 144
    for i in range(4): k.vmem(f"buffer_load_dwordx4 {v(RAW+4*i,4)}, v42, {srd(XS)}, s{T0} offen offset:{128*i}", ("ln", i))
    k.e(f"s_lshr_b32 s{T1}, s2, 1\ns_and_b32 s{T1}, s{T1}, 12\ns_add_u32 s{T1}, s{T1}, s{WAVE}\ns_lshl_b32 s{T1}, s{T1}, 13")
    k.e(f"v_lshlrev_b32 v{VCODE}, 7, v0\nv_add_u32 v{VCODE}, s{T1}, v{VCODE}\nv_min_u32 v{VCODE}, L_code_end-L_pc-4, v{VCODE}")
    if CPF & 1: k.vmem(code_touch(VDUM), "cpf")
    for d, off in ((B1, 56), (KC, 8), (VC, 16), (WO, 32), (W2, 64), (OUT, 80), (B2, 72)):
        k.e(f"s_load_dwordx2 s[{d}:{d+1}], s[0:1], {off}")
    k.e(f"s_lshl_b32 s{T1}, s2, 2\ns_add_u32 s{T1}, s{T1}, s{WAVE}\ns_cmp_lt_u32 s{T1}, 512\ns_cselect_b64 s[{TW}:{TW+1}], s[{WQ}:{WQ+1}], s[{W1}:{W1+1}]")
    k.e(f"s_cselect_b32 s{T2}, 8, 7\ns_lshl_b32 s{T3}, s{T2}, 6\ns_sub_u32 s{T3}, s{T3}, 1\ns_lshl_b32 s{T2}, s{T2}, 16\ns_and_b32 s{T1}, s{T1}, 511\ns_min_u32 s{T1}, s{T1}, s{T3}\ns_lshl_b32 s{T1}, s{T1}, 10")
    k.e(f"s_mul_i32 s{T3}, s{T2}, {W0}\ns_add_u32 s{T1}, s{T1}, s{T3}\nv_mov_b32 v{VTS}, s{T2}\nv_lshlrev_b32 v{VTW}, 4, v0\nv_add_u32 v{VTW}, s{T1}, v{VTW}")
    mk_srd(WQ, 1024*8192); mk_srd(W1, 1024*7168); mk_srd(WS, WS_BYTES); mk_srd(DBG, 256)
    k.e(f"v_lshrrev_b32 v44, 4, v0\nv_and_b32 v45, 15, v0")
    k.e(f"s_lshl_b32 s{T1}, s{WAVE}, 4\nv_add_u32 v46, s{T1}, v44")
    k.e(f"s_lshl_b32 s{T2}, s{J}, 8\ns_and_b32 s{T5}, s{J}, 1\ns_mul_i32 s{T3}, s{J}, 224\ns_lshl_b32 s{T4}, s{T5}, 5\ns_sub_u32 s{T3}, s{T3}, s{T4}\ns_movk_i32 s{T4}, 7168")
    if '--e1' in sys.argv: k.e(f"s_and_b32 s{T3}, s{T3}, 0xffffff80")
    k.e(f"v_mul_lo_u32 v51, v46, s{T4}")
    for h in range(2):
        k.e(f"v_or_b32 v47, {4*h}, v44\nv_lshlrev_b32 v47, 1, v47\nv_xor_b32 v47, v45, v47\nv_lshlrev_b32 v47, 4, v47")
        k.e(f"v_lshl_add_u32 v48, v46, 13, v47\nv_add_u32 v48, s{T2}, v48\nv_add3_u32 v50, v47, v51, s{T3}")
        for i in (2*h, 2*h+1): k.e(f"v_add_u32 v{G1D+i}, {i*(4*8192-1024)}, v48\nv_add_u32 v{G1D+4+i}, {i*(4*7168-1024)}, v50")
    k.e(f"s_mov_b32 s{SWQ}, 0\ns_mov_b32 s{SW1}, 0")
    k.e(f"s_lshl_b32 s{FLOWN}, s{RB}, 12\ns_add_u32 s{FLOWN}, s{FLOWN}, {FL_OFF}")
    k.e(f"s_or_b32 s{T1}, s{J}, s{WAVE}\ns_cmp_lg_u32 s{T1}, 0\ns_cbranch_scc1 L_nolead")
    k.e(f"v_and_b32 v52, 31, v0\nv_lshlrev_b32 v52, 7, v52")
    k.e(f"buffer_load_dword v53, v52, {srd(WS)}, s{FLOWN} offen sc1\ns_waitcnt vmcnt(0)")
    k.e(f"v_readfirstlane_b32 s{T1}, v53")
    k.e(f"L_lead:\ns_add_u32 s{T1}, s{T1}, 16\ns_cmp_eq_u32 s{T1}, 0\ns_cbranch_scc1 L_lead")
    k.e(f"v_subrev_u32 v54, s{T1}, v53\nv_cmp_gt_u32 vcc, 16, v54\ns_cbranch_vccnz L_lead")
    k.e(f"v_mov_b32 v54, s{T1}\nv_mov_b32 v55, 0\ns_lshl_b32 s{T1}, s{RB}, 5")
    k.e(f"buffer_store_dword v54, v55, {srd(DBG)}, s{T1} offen sc1")
    k.e("L_nolead:")
    emit_now(k, dma_items(0))
    if WL: emit_now(k, [w_touch() for _ in range(W0, 2 + WL)])
    k.e("s_waitcnt lgkmcnt(0)")
    mk_srd(B1, 7168); mk_srd(KC, 2*MB); mk_srd(VC, 2*MB); mk_srd(WO, 4096*2048); mk_srd(W2, 3584*2048); mk_srd(OUT, 4*MB); mk_srd(B2, 2048)
    k.e(f"v_lshlrev_b32 v{VL16}, 4, v0\nv_lshlrev_b32 v{VFP8}, 7, v40\nv_and_b32 v{VFP4}, 3, v0\nv_lshlrev_b32 v{VFP4}, 10, v{VFP4}")
    k.e(f"s_lshl_b32 s{T1}, s{WAVE}, 2\ns_add_u32 s{T1}, s{T1}, {LDS_SCR}\nv_lshlrev_b32 v43, 4, v40\nv_add_u32 v52, s{T1}, v43\nv_add_u32 v43, {LDS_SCR}, v43")
    for i in range(4):
        k.wait_vm([("ln", i)])
        for d in range(4):
            r = RAW + 4*i + d; o = X + 8*i + 2*d
            k.e(f"v_lshlrev_b32 v{o}, 16, v{r}\nv_and_b32 v{o+1}, 0xffff0000, v{r}")
    A_, B_, MEAN = 56, 51, 53
    k.e(f"v_add_f32 v{A_}, v{X}, v{X+1}\nv_add_f32 v{B_}, v{X+2}, v{X+3}")
    for i in range(4, 32, 2): k.e(f"v_add_f32 v{A_}, v{A_}, v{X+i}\nv_add_f32 v{B_}, v{B_}, v{X+i+1}")
    def allsum(off):
        k.e(f"v_add_f32 v{A_}, v{A_}, v{B_}")
        k.e(f"v_add_f32_dpp v{A_}, v{A_}, v{A_} row_ror:8 row_mask:0xf bank_mask:0xf")
        reduce4(A_, B_, "v_add_f32")
        k.e(f"ds_write_b32 v52, v{A_} offset:{off}\ns_waitcnt lgkmcnt(0)\ns_barrier")
        k.e(f"ds_read_b128 v[44:47], v43 offset:{off}\ns_waitcnt lgkmcnt(0)")
        k.e(f"v_add_f32 v44, v44, v45\nv_add_f32 v46, v46, v47\nv_add_f32 v{A_}, v44, v46\nv_mul_f32 v{A_}, {f32(1/1024)}, v{A_}")
    allsum(0)
    k.e(f"v_mov_b32 v{MEAN}, v{A_}\nv_mov_b32 v{A_}, 0\nv_mov_b32 v{B_}, 0")
    for i in range(0, 32, 2):
        k.e(f"v_sub_f32 v48, v{X+i}, v{MEAN}\nv_sub_f32 v49, v{X+i+1}, v{MEAN}\nv_fmac_f32 v{A_}, v48, v48\nv_fmac_f32 v{B_}, v49, v49")
    allsum(128)
    round_bf16(MEAN, MEAN); round_bf16(A_, A_)
    k.e(f"v_add_f32 v{A_}, {f32(1e-5)}, v{A_}"); round_bf16(A_, A_)
    k.e(f"v_sqrt_f32 v{A_}, v{A_}"); round_bf16(A_, A_)
    k.e(f"v_rcp_f32 v{A_}, v{A_}")
    k.e(f"s_lshl_b32 s{T0}, s{RB}, 2\ns_add_u32 s{T0}, s{T0}, s{R}\ns_lshl_b32 s{T0}, s{T0}, 17\ns_lshl_b32 s{T1}, s{WAVE}, 15\ns_add_u32 s{T0}, s{T0}, s{T1}")
    k.e(f"s_bfe_u32 s{T1}, s{J}, 0x20001\ns_lshl_b32 s{T1}, s{T1}, 10\ns_add_u32 s{T0}, s{T0}, s{T1}\ns_lshl_b32 s{T1}, s{T5}, 7\ns_add_u32 s{T0}, s{T0}, s{T1}")
    k.e("v_lshrrev_b32 v50, 2, v41\nv_and_b32 v51, 3, v41\nv_lshlrev_b32 v50, 12, v50\nv_lshl_add_u32 v50, v51, 8, v50\nv_lshl_add_u32 v50, v40, 4, v50")
    for i in range(4):
        for d in range(4):
            o = X + 8*i + 2*d; r = RAW + 4*i + d
            k.e(f"v_sub_f32 v48, v{o}, v{MEAN}\nv_sub_f32 v49, v{o+1}, v{MEAN}\nv_cvt_pk_bf16_f32 v48, v48, v49")
            k.e(f"v_and_b32 v49, 0xffff0000, v48\nv_lshlrev_b32 v48, 16, v48\nv_mul_f32 v48, v48, v{A_}\nv_mul_f32 v49, v49, v{A_}")
            k.e(f"v_cvt_pk_bf16_f32 v{r}, v48, v49")
        k.vmem(f"buffer_store_dwordx4 {v(RAW+4*i,4)}, v50, {srd(WS)}, s{T0} offen sc1", "lnst")
        if i < 3: k.e(f"s_add_u32 s{T0}, s{T0}, 8192")
    stamp()
    k.e(f"v_mov_b32 v55, 0\ns_lshl_b32 s{T4}, s{RB}, 5")
    NLOAD = f"buffer_load_dword v54, v55, {srd(DBG)}, s{T4} offen sc1"
    k.vmem(NLOAD, "nonce")
    BI = 112
    k.e(f"v_lshrrev_b32 v44, 4, v0\nv_lshlrev_b32 v{VQ8}, 3, v44\nv_add_u32 v46, s{T3}, v{VQ8}")
    k.e(f"s_lshl_b32 s{T0}, s{T5}, 6\ns_xor_b32 s{T1}, s{T5}, 1\ns_mul_i32 s{T1}, s{T1}, 192")
    for i in range(6): k.vmem(f"buffer_load_dwordx2 {v(BI+2*i,2)}, v46, {srd(B1)}, s{T0} offen offset:{32*i}", "bias")
    for i in range(2): k.vmem(f"buffer_load_dwordx2 {v(BI+12+2*i,2)}, v46, {srd(B1)}, s{T1} offen offset:{32*i}", "bias")
    emit_now(k, dma_items(1))
    k.e("v_bfe_u32 v45, v0, 2, 2\nv_lshl_add_u32 v46, v44, 3, v45\nv_lshlrev_b32 v46, 8, v46\nv_and_b32 v47, 3, v0")
    k.e("v_and_b32 v48, 1, v44\nv_lshl_or_b32 v48, v48, 2, v45")
    k.e("v_lshl_add_u32 v49, v47, 3, v46\nv_lshlrev_b32 v51, 1, v48\nv_xor_b32 v51, v51, v47")
    k.e(f"s_lshl_b32 s{T0}, s{T5}, 1")
    for t in range(8):
        k.e(f"s_add_u32 s{T1}, s{T0}, {t}\ns_and_b32 s{T1}, s{T1}, 7")
        k.e(f"v_xor_b32 v50, s{T1}, v48\nv_lshl_add_u32 v{G1F+t}, v50, 5, v49\nv_add_u32 v{G1F+8+t}, 0x10000, v{G1F+t}")
    k.e(f"s_lshl_b32 s{T0}, s{T5}, 11\nv_add_u32 v{VLA}, s{T0}, v{VL16}\nv_xor_b32 v{VLB}, 2048, v{VLA}")
    for t in range(4): k.e(f"v_xor_b32 v50, {4*t}, v51\nv_lshl_add_u32 v{G1Q+t}, v50, 4, v46\nv_add_u32 v{G1Q+4+t}, 0x10000, v{G1Q+t}")
    k.e("v_and_b32 v45, 15, v0\nv_lshlrev_b32 v46, 8, v45\nv_lshlrev_b32 v48, 1, v40\nv_xor_b32 v48, v48, v44")
    for t in range(4): k.e(f"v_xor_b32 v50, {4*t}, v48\nv_lshl_add_u32 v{WK+t}, v50, 4, v46\nv_add_u32 v{WK+4+t}, 0x10000, v{WK+t}")
    k.e("v_lshrrev_b32 v48, 2, v0\nv_lshlrev_b32 v46, 8, v48\nv_lshl_add_u32 v46, v47, 3, v46\nv_and_b32 v48, 7, v48")
    k.e(f"s_lshl_b32 s{T0}, s{R}, 1\ns_add_u32 s{T0}, s{T0}, 2")
    for t in range(8):
        k.e(f"s_add_u32 s{T1}, s{T0}, {t}\ns_and_b32 s{T1}, s{T1}, 7")
        k.e(f"v_xor_b32 v50, s{T1}, v48\nv_lshl_add_u32 v{WV+t}, v50, 5, v46\nv_add_u32 v{WV+8+t}, 0x10000, v{WV+t}")
    k.e(f"s_lshl_b32 s{T0}, s{R}, 19\ns_add_u32 s{T0}, s{T0}, s{M0KV}\ns_add_u32 s{T0}, s{T0}, {1536*256}")
    k.e(f"s_lshl_b32 s{T1}, s{WAVE}, 16\ns_lshl_b32 s{T2}, s{FB}, 8\ns_add_u32 s{T1}, s{T1}, s{T2}")
    for h in range(2):
        k.e(f"v_or_b32 v47, {4*h}, v44\nv_lshlrev_b32 v47, 1, v47\nv_xor_b32 v47, v45, v47\nv_lshlrev_b32 v47, 4, v47")
        k.e(f"v_lshl_add_u32 v48, v44, 8, v47\nv_add_u32 v{VKV+h}, s{T0}, v48\nv_subrev_u32 v{VKV+2+h}, 16384, v{VKV+h}")
        k.e(f"v_lshl_add_u32 v48, v44, 11, v47\nv_add_u32 v48, s{T1}, v48")
        for i in range(h, 8, 2): k.e(f"v_add_u32 v{VP3+i}, {i*8192 - (i%4)*1024}, v48")
    k.e(f"s_mov_b32 s{SKV}, 0\ns_lshl_b32 s{SW3}, s{J}, 18")
    k.e(f"s_lshl_b32 s{SX}, s{TOK64}, 17")
    k.e(f"s_lshl_b32 s{ST1}, s2, 2\ns_add_u32 s{ST1}, s{ST1}, s{WAVE}\ns_mul_i32 s{ST2}, s{ST1}, 7168\ns_lshl_b32 s{ST1}, s{ST1}, 13\nv_lshlrev_b32 v{VTCH}, 3, v0")
    k.e(f"v_or_b32 v47, s{WAVE}, v0\nv_cmp_eq_u32 vcc, 0, v47\nv_bfrev_b32 v48, 1\nv_cndmask_b32 v{VFST}, v48, 0, vcc")
    k.e(f"s_lshl_b32 s{T0}, s{WAVE}, 10\ns_add_u32 s{T0}, s{T0}, s{FLOWN}")
    k.e(f"s_lshl_b32 s{T1}, s{J}, 7\ns_add_u32 s{FLOWN}, s{FLOWN}, s{T1}")
    k.wait_vm(["lnst", "nonce"])
    k.e(f"s_mov_b32 s3, {SPIN_LIMIT}")
    k.e(f"L_nonce:\nv_readfirstlane_b32 s{NONCE}, v54\ns_cmp_lg_u32 s{NONCE}, 0\ns_cbranch_scc1 L_nonce_ok")
    k.e(f"{NLOAD}\ns_waitcnt vmcnt(0)\ns_sub_u32 s3, s3, 1\ns_cmp_lg_u32 s3, 0\ns_cbranch_scc1 L_nonce")
    k.e("L_nonce_ok:\ns_barrier")
    k.e(f"s_add_u32 s{T1}, s{NONCE}, 1\nv_mov_b32 v{VFVAL}, s{T1}")
    k.vmem(FLAG_STORE, "flag")
    stamp()
    k.vmem(poll_load(VFP8, T0), ("poll", "xn"))
    k.wait_vm(["bias"])
    for ft in range(8):
        b = facc(ft, 0)
        k.e(f"v_lshlrev_b32 v{b}, 16, v{BI+2*ft}\nv_and_b32 v{b+1}, 0xffff0000, v{BI+2*ft}")
        k.e(f"v_lshlrev_b32 v{b+2}, 16, v{BI+1+2*ft}\nv_and_b32 v{b+3}, 0xffff0000, v{BI+1+2*ft}")
        for tt in range(1, 4 if ft < 6 else 2):
            for r in range(4): k.e(f"v_mov_b32 v{b+4*tt+r}, v{b+r}")
    k.wait_vm([("poll", "xn")])
    for t in poll_check("xn", VFP8, T0, T1, 1): k.e(t)
    stamp()
    for kap in range(XD): emit_now(k, x_items(kap))

EORD = (3, 0, 1, 2)
EARLY = '--noearly' not in sys.argv
def build_frags():
    frags = []
    def add(st, reads): frags.append(dict(stage=st, reads=reads))
    for st in range(16):
        w = 1 if (st % 4) >= 2 else 0
        for ks in range(2):
            for ft in range(16):
                if ft < 8: reg, off = G1Q + 4*w + ft//2, (st % 2)*32768 + ks*8192 + (ft % 2)*8
                else: reg, off = G1F + 8*w + ft - 8, (st % 2)*32768 + 16384 + ks*8192
                add(st, lambda r, reg=reg, off=off: [f"ds_read_b64_tr_b16 {a(r,2)}, v{reg} offset:{off}", f"ds_read_b64_tr_b16 {a(r+2,2)}, v{reg} offset:{off+1024}"])
    def trw(st, base, t):
        w = 1 if (st % 4) >= 2 else 0; off = (st % 2)*32768 + base
        add(st, lambda r, reg=WV + 8*w + t, off=off: [f"ds_read_b64_tr_b16 {a(r,2)}, v{reg} offset:{off}", f"ds_read_b64_tr_b16 {a(r+2,2)}, v{reg} offset:{off+4096}"])
    for b in range(32):
        st = 16 + b//4; w = 1 if (st % 4) >= 2 else 0
        isk = b == 0 or (b % 2 == 1 and b < 31)
        for n in range(8):
            if isk:
                kt, ks = divmod(n, 4)
                add(st, lambda r, reg=WK + 4*w + ks, off=(st % 2)*32768 + (b % 4)*8192 + kt*4096: [f"ds_read_b128 {a(r,4)}, v{reg} offset:{off}"])
            else: trw(st, (b % 4)*8192, n)
    for m in EORD:
        for ft in range(8): trw(24, m*8192, ft)
    t0 = NACT - TAILK
    order = [(n, ft) for n in range(t0) for ft in range(8)]
    order += [(n, ft) for n in range(t0, NACT - 4) for ft in range(6)]
    order += [(n, ft) for p in range(3) for n in range(NACT - 4, NACT) for ft in (2*p, 2*p+1)]
    order += [(n, ft) for n in range(t0, NACT) for ft in (6, 7)]
    for n, ft in order: trw(25 + n//4, (n % 4)*8192, ft)
    return frags, order

def main_body():
    frags, order = build_frags()
    S = Sched(k, frags, AR)
    bar_hooks = {}
    def mk_after(st):
        def f():
            if not (EARLY and st >= 24): S.q['d'].extend(dma_items(st + 2))
            for h in bar_hooks.get(st, []): h()
        return f
    first_of = {}
    for i, fr in enumerate(frags):
        if fr["first"]:
            first_of[fr["stage"]] = fr
            if fr["stage"] > 0: fr["after_bar"] = mk_after(fr["stage"])
    def mid_barrier(st):
        if EARLY and st + 3 < 39:
            k.e("s_barrier"); S.q['d'].extend(dma_items(st + 3))
    def flag_tasks(phase, sref):
        return [Task(f"s_add_u32 s{sref}, s{NONCE}, {phase}"), Task(f"v_mov_b32 v{VFVAL}, s{sref}"), Task(FLAG_STORE, tag="flag")]
    def poll_tasks(name, voff, soff, sref, phase, then):
        c = poll_check(name, voff, soff, sref, phase)
        def fin():
            k.e(c[2]); then()
        return [Task(fn=lambda: k.wait_vm([("poll", name)])), Task(c[0]), Task(c[1]), Task(fn=fin)]
    k.region = "gemm1"
    G1VQ = {0: 'd', 1: 'x', 3: 'd', 4: 'x', 6: 'p', 7: 'd', 8: 'x', 10: 'd', 11: 'x', 12: 'p', 13: 'd'}
    S.q['d'].extend(dma_items(2))
    S.prime(S.look)
    stamp()
    for kap in range(32):
        S.q['x'].extend(x_items(kap + XD))
        if kap in (0, 1, 2, 4, 6, 8, 12, 16, 20, 24, 28): stamp('g1')
        if TOUCH and kap < 30:
            sr, so = (WO, ST1) if kap < 16 else (W2, ST2)
            S.q['p'].append((None, f"buffer_load_dword v{VDUM}, v{VTCH}, {srd(sr)}, s{so} offen", "pf", f"s_add_u32 s{so}, s{so}, 512"))
        if WL and kap % 2 == 0 and kap//2 + 2 + WL < 16: S.q['p'].append(w_touch())
        if CPF & 2 and kap == 30: S.q['p'].append((None, code_touch(VDUM), "pf", None))
        for ft in range(16):
            def mf(ar, ft=ft, kap=kap):
                out = []
                for tt in range(4 if ft < 14 else 2):
                    acc = a(QACC + (ft*4+tt)*4, 4) if ft < 8 else v(facc(ft-8, tt), 4)
                    out.append(f"{MFMA} {acc}, {a(ar,4)}, {xreg(kap, tt)}, {'0' if kap == 0 and ft < 8 else acc}")
                return out
            pre = (lambda kap=kap: k.wait_vm([("x", kap)])) if ft == 0 else None
            S.group(mf, pre=pre, nextpre=1 if ft == 15 else 0, vq=G1VQ.get(ft))
    S.flush_side()
    stamp()
    k.region = "gelu"
    CQ, CG, C1 = 6, 8, 10
    qs = (128 ** -0.5) * math.log2(math.e)
    k.e(f"s_mov_b32 s{CQ}, {f32(qs)}\ns_mov_b32 s{CQ+1}, {f32(qs)}")
    k.wait_vm(["pf"])
    T = VT
    TV = VPOLL
    TW2 = T5
    if TS: k.e(f"v_lshlrev_b32 v{TV}, {TS}, v0\ns_mov_b32 s3, s{ST1}\ns_mov_b32 s{TW}, s{ST2}")
    for qt in range(4):
        for ks in range(4):
            for b in range(2):
                src = QACC + ((2*ks+b)*4 + qt)*4
                for r in range(4): k.e(f"v_accvgpr_read_b32 v{T+4*b+r}, a{src+r}")
            for p in range(4): k.e(f"v_pk_mul_f32 {v(T+2*p,2)}, {v(T+2*p,2)}, s[{CQ}:{CQ+1}]")
            for p in range(4): k.e(f"v_cvt_pk_bf16_f32 v{QF+(qt*4+ks)*4+p}, v{T+2*p}, v{T+2*p+1}")
    kk = 2*math.sqrt(2/math.pi)*math.log2(math.e)
    k.e(f"s_mov_b32 s{CG}, {f32(-0.044715*kk)}\ns_mov_b32 s{CG+1}, {f32(-0.044715*kk)}")
    k.e(f"v_mov_b32 v{T+8}, {f32(-kk)}\nv_mov_b32 v{T+9}, {f32(-kk)}")
    k.e(f"s_mov_b32 s{C1}, 1.0\ns_mov_b32 s{C1+1}, 1.0")
    k.e(f"s_mul_i32 s{SX}, s{TOK64}, 458752\ns_add_u32 s{SX}, s{SX}, {H_OFF}")
    k.e(f"s_lshr_b32 s{T1}, s{J}, 1\ns_mul_i32 s{T1}, s{T1}, {7*4096}\ns_add_u32 s{T0}, s{SX}, s{T1}")
    k.e(f"s_and_b32 s{T5}, s{J}, 1\ns_add_u32 s{T2}, s{T0}, {3*4096}")
    k.e(f"s_lshl_b32 s{T1}, s{T5}, 14\ns_add_u32 s{T0}, s{T0}, s{T1}")
    k.e(f"s_mul_i32 s{T1}, s{R}, {28*4096}\ns_add_u32 s{SX}, s{SX}, s{T1}")
    k.e(f"s_lshl_b32 s{SXO}, s{TOK64}, 19\ns_add_u32 s{SXO}, s{SXO}, {O_OFF}\ns_lshl_b32 s{T1}, s{J}, 14\ns_add_u32 s{SOB}, s{SXO}, s{T1}")
    k.e(f"s_lshl_b32 s{T1}, s{R}, 17\ns_add_u32 s{SXO}, s{SXO}, s{T1}")
    def gelu4(x, dst, t):
        for p in range(2): k.e(f"v_pk_mul_f32 {v(t+2*p,2)}, {v(x+2*p,2)}, {v(x+2*p,2)}")
        for p in range(2): k.e(f"v_pk_fma_f32 {v(t+2*p,2)}, {v(t+2*p,2)}, s[{CG}:{CG+1}], {v(T+8,2)}")
        for p in range(2): k.e(f"v_pk_mul_f32 {v(t+2*p,2)}, {v(t+2*p,2)}, {v(x+2*p,2)}")
        for r in range(4): k.e(f"v_exp_f32 v{t+r}, v{t+r}")
        for p in range(2): k.e(f"v_pk_add_f32 {v(t+2*p,2)}, {v(t+2*p,2)}, s[{C1}:{C1+1}]")
        for r in range(4): k.e(f"v_rcp_f32 v{t+r}, v{t+r}")
        for p in range(2): k.e(f"v_pk_mul_f32 {v(t+2*p,2)}, {v(t+2*p,2)}, {v(x+2*p,2)}")
        for p in range(2): k.e(f"v_cvt_pk_bf16_f32 v{dst+p}, v{t+2*p}, v{t+2*p+1}")
    n = 0
    for m in range(4):
        for tt in range(4 if m < 3 else 2):
            d = 240 + (n % 4)*4; n += 1
            gelu4(facc(2*m, tt), d, T); gelu4(facc(2*m+1, tt), d+2, T+4)
            k.vmem(f"buffer_store_dwordx4 {v(d,4)}, {vl(tt)}, {srd(WS)}, s{T0 if m < 3 else T2} offen offset:{to(tt)} sc1", "hst")
        if m < 2: k.e(f"s_add_u32 s{T0}, s{T0}, 4096")
    FLG8, FLG4 = 6, 7
    k.e(f"s_lshl_b32 s{T0}, s{RB}, 12\ns_add_u32 s{T0}, s{T0}, {FL_OFF}\ns_lshl_b32 s{T1}, s{R}, 10\ns_add_u32 s{FLG8}, s{T0}, s{T1}\ns_lshl_b32 s{T1}, s{FB}, 7\ns_add_u32 s{FLG4}, s{T0}, s{T1}")
    OST = 8
    PST, PLD = 66, 16
    k.e(f"s_lshl_b32 s{T0}, s{RB}, 3\ns_add_u32 s{T0}, s{T0}, s{FB}\ns_lshl_b32 s{T0}, s{T0}, 18\ns_add_u32 s{T0}, s{T0}, s{M0W}\ns_add_u32 s{T0}, s{T0}, {PF_OFF}")
    for m in range(4):
        k.e(f"s_add_u32 s{T1}, s{R}, {m+1}\ns_and_b32 s{T1}, s{T1}, 3\ns_lshl_b32 s{T2}, s{T1}, 12\ns_add_u32 s{OST+m}, s{SOB}, s{T2}")
        if m < 3:
            k.e(f"s_lshl_b32 s{T2}, s{T1}, 16\ns_lshl_b32 s{T3}, s{R}, 14\ns_add_u32 s{T2}, s{T2}, s{T3}\ns_add_u32 s{PST+m}, s{T0}, s{T2}")
            k.e(f"s_lshl_b32 s{T2}, s{R}, 16\ns_lshl_b32 s{T3}, s{T1}, 14\ns_add_u32 s{T2}, s{T2}, s{T3}\ns_add_u32 s{PLD+m}, s{T0}, s{T2}")
    k.e(f"s_lshl_b32 s{SWB}, s{R}, 21\ns_sub_u32 s{M0O}, s{WAVE}, s{R}\ns_add_u32 s{M0O}, s{M0O}, 3\ns_and_b32 s{M0O}, s{M0O}, 3\ns_lshl_b32 s{M0O}, s{M0O}, 13")
    COL, OOF = M0W, DBG
    k.e(f"s_lshl_b32 s{COL}, s{FB}, 8\ns_lshl_b32 s{T0}, s{R}, 6\ns_add_u32 s{COL}, s{COL}, s{T0}")
    k.e(f"s_lshl_b32 s{T0}, s{TOK64}, 17\ns_add_u32 s{T0}, s{T0}, s{COL}\ns_lshl_b32 s{T1}, s{T5}, 16\ns_add_u32 s{OOF}, s{T0}, s{T1}")
    for tt in range(1, 4): k.e(f"s_xor_b32 s{OOF+tt}, s{OOF}, {tt*32768}")
    k.region = "attn"
    stamp()
    first_of[18]["also"] = ["hst"]
    bar_hooks[18] = [lambda: S.tasks.extend(flag_tasks(2, T4))]
    for r in range(4): k.e(f"v_mov_b32 v{ONES+r}, 0x3f803f80")
    def sreg(u, qt, kt): return SB + (u % 2)*32 + qt*8 + kt*4
    cnt = [0]
    def aq():
        cnt[0] += 1
        if frags[S.f] is first_of[23]: mid_barrier(23)
        return ['d', 'x'] if cnt[0] % 2 == 0 else None
    def qk_groups(u):
        for kt in range(2):
            for ks in range(4):
                def mf(ar, kt=kt, ks=ks):
                    out = []
                    for qt in range(4):
                        d = v(sreg(u, qt, kt), 4)
                        c = d if ks > 0 else ("0" if u < 2 else v(NEGM + qt*4, 4))
                        out.append(f"{MFMA} {d}, {a(ar,4)}, {v(QF+(qt*4+ks)*4,4)}, {c}")
                    return out
                S.group(mf, vq=aq(), gv=3 if cnt[0] % 2 else 2, rdsplit=False)
    def soft_tasks(u):
        tk = []
        def t(x): tk.append(Task(x, mark=("s", u)))
        if u == 0:
            for qt in range(4):
                b = sreg(0, qt, 0); m = NEGM + qt*4
                t(f"v_max3_f32 v{m}, v{b}, v{b+1}, v{b+2}"); t(f"v_max3_f32 v{m}, v{m}, v{b+3}, v{b+4}")
                t(f"v_max3_f32 v{m}, v{m}, v{b+5}, v{b+6}"); t(f"v_max_f32 v{m}, v{m}, v{b+7}")
            for sw in ("32", "16"):
                for qt in range(4): t(f"v_mov_b32 v{NEGM+qt*4+1}, v{NEGM+qt*4}")
                for qt in range(4): t(f"v_permlane{sw}_swap_b32 v{NEGM+qt*4}, v{NEGM+qt*4+1}")
                for qt in range(4): t(f"v_max_f32 v{NEGM+qt*4}, v{NEGM+qt*4}, v{NEGM+qt*4+1}")
            for qt in range(4):
                for r in range(3, -1, -1): t(f"v_sub_f32 v{NEGM+qt*4+r}, 0, v{NEGM+qt*4}")
        for qt in range(4):
            b = sreg(u, qt, 0)
            for p in range(4):
                for r in (2*p, 2*p+1):
                    if u < 2: t(f"v_add_f32 v{b+r}, v{b+r}, v{NEGM+qt*4}")
                    t(f"v_exp_f32 v{b+r}, v{b+r}")
                t(f"v_cvt_pk_bf16_f32 v{b+p}, v{b+2*p}, v{b+2*p+1}")
        return tk
    def pv_groups(u):
        first = u == 0
        for dt in range(8):
            def mf(ar, dt=dt):
                return [f"{MFMA} {a(QACC + (dt*4+qt)*4, 4)}, {a(ar,4)}, {v(sreg(u, qt, 0),4)}, {'0' if first else a(QACC + (dt*4+qt)*4, 4)}" for qt in range(4)]
            S.group(mf, vq=aq(), gv=3 if cnt[0] % 2 else 2, rdsplit=False)
        S.group(lambda _: [f"{MFMA} {v(LACC+qt*4,4)}, {v(ONES,4)}, {v(sreg(u, qt, 0),4)}, {'0' if first else v(LACC+qt*4,4)}" for qt in range(4)], frag=False)
    HPOLL = opt('--hpoll', 7)
    qk_groups(0)
    S.tasks.extend(soft_tasks(0))
    for u in range(16):
        if TS and u == opt('--tu2', 0): S.q['x'].extend((None, f"buffer_load_dword v{VCD}, v{TV}, {srd(W2)}, s{TW} offen", "tch", f"s_add_u32 s{TW}, s{TW}, {64 << TS}") for _ in range(-(-7168 // (64 << TS))))
        if TS and u == TU: S.q['x'].extend((None, f"buffer_load_dword v{VCD}, v{TV}, {srd(WO)}, s3 offen", "tch", f"s_add_u32 s3, s3, {64 << TS}") for _ in range(8192 // (64 << TS)))
        if CPF & 4 and u == 6: S.q['x'].append((None, code_touch(VCD), "cpf", None))
        if u == HPOLL: S.q['x'].append((None, poll_load(VFP8, FLG8), ("poll", "h"), None))
        if u + 1 < 16: qk_groups(u + 1)
        S.flush(("s", u))
        if u == HPOLL + 1:
            S.tasks.extend(poll_tasks("h", VFP8, FLG8, T4, 2, lambda: [S.q['x'].extend(act_items(n)) for n in range(6)]))
        if u + 1 < 16: S.tasks.extend(soft_tasks(u + 1))
        pv_groups(u)
    S.flush()
    stamp()
    k.region = "chk"
    k.e(f"s_mov_b32 s{T5}, 0")
    k.e("L_norm:")
    k.e("s_nop 7")
    k.e(f"v_add_f32 v{VT}, v{LACC}, v{LACC+4}\nv_add_f32 v{VT+1}, v{LACC+8}, v{LACC+12}\nv_add_f32 v{VT}, v{VT}, v{VT+1}")
    k.e(f"s_mov_b32 s{T0}, {f32(2.0**30)}\nv_cmp_nge_f32 vcc, s{T0}, v{VT}")
    k.e(f"s_cmp_lg_u32 s{T5}, 0\ns_cbranch_scc1 L_normok\ns_cbranch_vccnz L_slow\nL_normok:")
    k.region = "s2o"
    RCP, BIAS, SEL, VOUT = VKV, WK, WK, VKV
    for b in range(2): k.vmem(f"buffer_load_dwordx2 {v(BIAS+4+2*b,2)}, v{VQ8}, {srd(B2)}, s{COL} offen offset:{32*b}", "b2")
    for qt in range(4): k.e(f"v_rcp_f32 v{RCP+qt}, v{LACC+qt*4}")
    OS, OP, OW, OA = opt('--os', 60), opt('--op', 9), opt('--ow', 110), opt('--oa', 10)
    OM = opt('--omode', 'sc1').replace('_', ' ').replace('plain', '')
    SKIP = opt('--skip', 8)
    holds = []
    ngrp = [0]
    def choose():
        ngrp[0] += 1
        if not (S.q['x'] or S.q['d']): return None
        for h in holds:
            if h[0] <= S.nm < h[1]:
                if h[2] <= 0: return None
                h[2] -= 1
        def dl(it): return it[2][1] if it[2][0] == "act" else ((it[2][1] - 25)*4 - 1 if it[2][0] == "dma" else -99)
        def best(): return min((q for q in 'xd' if S.q[q]), key=lambda q: dl(S.q[q][0]), default=None)
        urgent = dl(S.q[best()][0]) - cur[0] <= URG
        if ngrp[0] % SKIP == SKIP - 1 and not urgent: return None
        if urgent and len(S.q['x']) + len(S.q['d']) > 1 and dl(S.q[best()][0]) - cur[0] <= URG - 1:
            for t in S.carry: k.e(t)
            S.carry = []
            q = S.q[best()]; lead.append((cur[0], q[0][2])); emit_now(k, q[:1]); del q[:1]
        lead.append((cur[0], S.q[best()][0][2]))
        return [best()]
    cur = [-4]; lead = []; URG = opt('--urg', 3)
    mid_barrier(24)
    nm0 = S.nm
    holds += [[nm0 + OS, nm0 + OS + 16*OP, 0], [nm0 + OS + 16*OP, nm0 + OS + 16*OP + OW, OA]]
    for e, m in enumerate(EORD):
        for qt in range(4):
            n = e*4 + qt
            t0 = VT + (n % 2)*8; d = OF + n*4; tk = []
            for b in range(2):
                src = QACC + ((2*m+b)*4+qt)*4
                for r in range(4): tk.append(f"v_accvgpr_read_b32 v{t0+4*b+r}, a{src+r}")
            if e == 0:
                pr = (RCP + qt) & ~1; hi = (RCP + qt) & 1
                for p in range(4): tk.append(f"v_pk_mul_f32 {v(t0+2*p,2)}, {v(t0+2*p,2)}, {v(pr,2)} op_sel:[0,{hi}] op_sel_hi:[1,{hi}]")
            else:
                for r in range(8): tk.append(f"v_mul_f32 v{t0+r}, v{t0+r}, v{RCP+qt}")
            for p in range(4): tk.append(f"v_cvt_pk_bf16_f32 v{d+p}, v{t0+2*p}, v{t0+2*p+1}")
            S.tasks.extend(Task(x, mark=("o", e)) for x in tk)
            S.tasks.append(Task(f"buffer_store_dwordx4 {v(d,4)}, {vl(qt)}, {srd(WS)}, s{OST+m} offen offset:{to(qt)} {OM}", tag="ost",
                                mark="olo" if e < 2 else None, after=nm0 + OS + OP*n))
            if e == 0:
                S.flush(("o", 0))
                emit_now(k, S.q['d'][:1]); del S.q['d'][:1]
    S.tasks.extend([Task(f"v_and_b32 v{VT}, 15, v0"), Task(f"v_lshlrev_b32 v{VT}, 11, v{VT}"), Task(f"v_lshl_add_u32 v{VOUT}, v{VQ8}, 1, v{VT}")])
    S.q['x'].extend(act_items(6) + act_items(7))
    for e, m in enumerate(EORD):
        S.flush(("o", e))
        if e == 3:
            k.wait_vm(["b2"])
            S.tasks[:0] = [Task(x, mark="bias") for b in range(2) for p in range(2) for x in
                           (f"v_lshlrev_b32 v{BIAS+4*b+2*p}, 16, v{BIAS+4+2*b+p}", f"v_and_b32 v{BIAS+4*b+2*p+1}, 0xffff0000, v{BIAS+4+2*b+p}")]
        for ft in range(8):
            def mf(ar, e=e, ft=ft):
                return [f"{MFMA} {v(SACC+(ft*4+tt)*4,4)}, {a(ar,4)}, {v(OF+(e*4+tt)*4,4)}, {'0' if e == 0 else v(SACC+(ft*4+tt)*4,4)}" for tt in range(4)]
            S.group(mf, vq=choose(), nextpre=1 if (e, ft) == (3, 7) else 0)
    stamp()
    k.region = "f2"
    OBAR, OPOLL, FBAR, FPOLL, FSUM = opt('--obar', 28), opt('--opoll', 18), opt('--fbar', 35), opt('--fpoll', 43), opt('--fsum', 47)
    FS, FP, FW, FA = opt('--fs', 40), opt('--fp', 9), opt('--fw', 110), opt('--fa', 10); XLD = opt('--xld', 14); SFLAG = opt('--sflag', 4); XUN = opt('--xun', 22)
    first_of[OBAR]["also"] = ["ost"]
    bar_hooks[OBAR] = [lambda: S.tasks.extend(flag_tasks(3, T4))]
    first_of[FBAR]["also"] = ["pst"]
    bar_hooks[FBAR] = [lambda: S.tasks.extend(flag_tasks(4, T4))]
    gate = {"o": False, "f": False}
    pending = []
    def acc_of(n, ft, tt):
        if n >= 28: return v(SACC + (ft*4+tt)*4, 4)
        return a(QACC + (ft*4+tt)*4, 4) if ft < 6 else v(FOWN + ((ft-6)*4+tt)*4, 4)
    def release(g):
        gate[g] = True
        for it in pending: S.q['x'].extend(it)
        del pending[:]
    PIN = 48
    def xres(b, tt): return XRES + tt*8 + b*4
    def x_unpack():
        tk = [Task(fn=lambda: k.wait_vm(["xres"]))]
        for tt in range(4):
            d = XRES + 16 + 4*tt
            for sw in ("16", "32"): tk += [Task(f"v_permlane{sw}_swap_b32 v{d}, v{d+2}"), Task(f"v_permlane{sw}_swap_b32 v{d+1}, v{d+3}")]
            for p in range(4): tk += [Task(f"v_lshlrev_b32 v{XRES+8*tt+2*p}, 16, v{d+p}"), Task(f"v_and_b32 v{XRES+8*tt+2*p+1}, 0xffff0000, v{d+p}")]
        tk += [Task(x) for x in (f"v_and_b32 v{VT}, 15, v0", f"v_lshrrev_b32 v{VT+1}, 1, v{VQ8}", f"v_sub_u32 v{VT}, v{VT}, v{VT+1}",
               f"v_mov_b32 v{SEL}, 0", f"v_mov_b32 v{SEL+1}, 0", f"v_mov_b32 v{SEL+4}, 0", f"v_mov_b32 v{SEL+5}, 0", f"v_mov_b32 v{VT+1}, 0x3f80", f"v_mov_b32 v{VT+2}, 0x3f800000")]
        for p in range(2):
            tk += [Task(x) for x in (f"v_cmp_eq_u32 vcc, {2*p}, v{VT}", f"v_cndmask_b32 v{SEL+2+p}, 0, v{VT+1}, vcc", f"v_cmp_eq_u32 vcc, {2*p+1}, v{VT}", f"v_cndmask_b32 v{SEL+2+p}, v{SEL+2+p}, v{VT+2}, vcc")]
        S.tasks.extend(tk)
    def f_publish():
        n = 0
        holds.extend([[S.nm + FS, S.nm + FS + 12*FP, 0], [S.nm + FS + 12*FP, S.nm + FS + 12*FP + FW, FA]])
        for m in range(3):
            for tt in range(4):
                t0 = VT + (n % 2)*8; af = S.nm + FS + FP*n; n += 1
                for b in range(2):
                    src = QACC + ((2*m+b)*4+tt)*4
                    for r in range(4): S.tasks.append(Task(f"v_accvgpr_read_b32 v{t0+4*b+r}, a{src+r}", mark="pf"))
                for p in range(4): S.tasks.append(Task(f"v_cvt_pk_bf16_f32 v{t0+p}, v{t0+2*p}, v{t0+2*p+1}"))
                S.tasks.append(Task(f"buffer_store_dwordx4 {v(t0,4)}, v{VL16}, {srd(WS)}, s{PST+m} offen offset:{tt*1024} sc1", tag="pst", after=af))
        for m in range(3): S.tasks.append(Task(f"s_add_u32 s{PST+m}, s{PST+m}, {PS_OFF-PF_OFF}"))
    def f_gather():
        for i in range(3):
            for tt in range(4): S.tasks.append(Task(f"buffer_load_dwordx4 {a(PIN+(i*4+tt)*4,4)}, v{VL16}, {srd(WS)}, s{PLD+i} offen offset:{tt*1024} sc1", tag="fin"))
            S.tasks.append(Task(f"s_add_u32 s{PLD+i}, s{PLD+i}, {PS_OFF-PF_OFF}"))
    def f_finish():
        assert not any(t.tag == "fin" for t in S.tasks) and "fin" in k.vm
        for i in range(3):
            for h in range(2):
                S.group(lambda _, i=i, h=h: [f"{MFMA} {v(FOWN+(b*4+tt)*4,4)}, {v(SEL+2-2*b,4)}, {a(PIN+(i*4+tt)*4,4)}, {v(FOWN+(b*4+tt)*4,4)}" for tt in (2*h, 2*h+1) for b in range(2)],
                        frag=False, pre=(lambda: k.wait_vm(["fin"])) if i == h == 0 else None, vq=choose())
        release("f")
        tk = []
        for c in range(8):
            g = FOWN + 4*c; t = VT + 4*(c % 4)
            for r in range(4): tk.append(Task(f"v_mul_f32 v{t+r}, {f32(-math.log2(math.e))}, v{g+r}"))
            for r in range(4): tk.append(Task(f"v_exp_f32 v{t+r}, v{t+r}"))
            for r in range(4): tk.append(Task(f"v_add_f32 v{t+r}, 1.0, v{t+r}"))
            for r in range(4): tk.append(Task(f"v_rcp_f32 v{t+r}, v{t+r}"))
            for r in range(4): tk.append(Task(f"v_mul_f32 v{g+r}, v{g+r}, v{t+r}"))
        S.tasks.extend(tk)
    def s_publish(m):
        tk = []
        for tt in range(4):
            d = SACC + ((2*m)*4+tt)*4; e_ = SACC + ((2*m+1)*4+tt)*4
            tk += [Task(f"v_cvt_pk_bf16_f32 v{d}, v{d}, v{d+1}"), Task(f"v_cvt_pk_bf16_f32 v{d+1}, v{d+2}, v{d+3}"),
                   Task(f"v_cvt_pk_bf16_f32 v{d+2}, v{e_}, v{e_+1}"), Task(f"v_cvt_pk_bf16_f32 v{d+3}, v{e_+2}, v{e_+3}"),
                   Task(f"buffer_store_dwordx4 {v(d,4)}, v{VL16}, {srd(WS)}, s{PST+m} offen offset:{tt*1024} sc1", tag="pst", mark="ps")]
        i = max([j + 1 for j, t in enumerate(S.tasks) if t.mark == "ps"], default=0)
        S.tasks[i:i] = tk
    seen = set()
    gp = (NACT - TAILK)*8 + (TAILK - 4)*6
    for gi, (n, ft) in enumerate(order):
        new = n not in seen
        if gi % 32 == 0: stamp('p3a')
        if gi >= 224 and gi % 16 == 0: stamp('p3b')
        if gi >= 320 and gi % 16 == 0: stamp('p3c')
        if gi < 224 and gi % 16 == 0: stamp('p3d')
        if (n, ft) == (0, 6): S.flush("bias"); S.flush("olo")
        if new:
            seen.add(n)
            cur[0] = n
            if n % 4 == 0: mid_barrier(25 + n//4)
            if n == XLD:
                for tt in range(4): S.tasks.append(Task(f"buffer_load_dwordx4 {v(XRES+16+4*tt,4)}, v{VOUT}, {srd(XS)}, s{OOF+tt} offen", tag="xres"))
            if n == 28:
                k.region = "s2"; stamp()
                f_publish()
            if CPF & 8 and n == 16: S.q['x'].append((None, code_touch(VCD), "cpf", None))
            if n == XUN: x_unpack()
            if n == OPOLL: S.q['x'].insert(0, (None, poll_load(VFP8, FLG8), ("poll", "o"), None))
            if n == OPOLL + 2: S.tasks.extend(poll_tasks("o", VFP8, FLG8, T4, 3, lambda: release("o")))
            if n == FPOLL: S.q['x'].insert(0, (None, poll_load(VFP4, FLG4), ("poll", "pf"), None))
            if n == FPOLL + 1: S.tasks.extend(poll_tasks("pf", VFP4, FLG4, T4, 4, f_gather))
            if n == FSUM: f_finish()
            if n + AD == NACT - 6: S.flush("pf")
            it = act_items(n + AD) if n + AD > 7 else []
            if (n + AD >= 28 and not gate["o"]) or (n + AD >= NACT - 3 and not gate["f"]): pending.append(it)
            else: S.q['x'].extend(it)
        if gi > gp and (gi - gp) % 8 == 0 and gi <= gp + 24: s_publish((gi - gp)//8 - 1)
        if gi == len(order) - SFLAG:
            S.flush("ps")
            S.tasks[:0] = [Task(fn=lambda: k.wait_vm(["pst"])), Task(fn=lambda: k.e("s_barrier"))] + flag_tasks(5, T4) + [Task(poll_load(VFP4, FLG4), tag=("poll", "ps"))]
        def mf(ar, n=n, ft=ft):
            c = lambda tt: acc_of(n, ft, tt) if n else ('0' if ft < 6 else v(BIAS + 4*(ft-6), 4))
            return [f"{MFMA} {acc_of(n, ft, tt)}, {a(ar,4)}, {actreg(n, tt)}, {c(tt)}" for tt in range(4)]
        def pre(n=n):
            assert not any(it[2] == ("act", n) for it in S.q['x']), n
            k.wait_vm([("act", n)])
        nxt = gi + 1 < len(order) and order[gi+1][0] not in seen and order[gi+1][0] != n
        S.group(mf, pre=pre if new else None, nextpre=1 if nxt else 0, vq=choose())
    S.flush(); S.flush_side()
    if '--lead' in sys.argv: print(sorted(dict((str(t), c) for c, t in lead).items(), key=lambda x: x[1]))
    stamp(); stamp('p3c')
    k.region = "final"
    SOWN = SACC + 96
    k.wait_vm([("poll", "ps")])
    for t in poll_check("ps", VFP4, FLG4, T4, 5): k.e(t)
    stamp()
    for i in range(3):
        for tt in range(4): k.vmem(f"buffer_load_dwordx4 {a((i*4+tt)*4,4)}, v{VL16}, {srd(WS)}, s{PLD+i} offen offset:{tt*1024} sc1", ("sin", i))
    for i in range(3):
        k.wait_vm([("sin", i)])
        for tt in range(4):
            for b in range(2):
                d = v(SOWN + (b*4+tt)*4, 4)
                k.e(f"{MFMA} {d}, {v(SEL + 2 - 2*b, 4)}, {a((i*4+tt)*4,4)}, {d}")
    stamp()
    for tt in range(4):
        d = 64 + tt*4
        for b in range(2):
            for p in range(2):
                o = (b*4+tt)*4 + 2*p
                k.e(f"v_pk_fma_f32 {v(SOWN+o,2)}, {v(SOWN+o,2)}, {v(FOWN+o,2)}, {v(xres(b, tt)+2*p,2)}")
        for b in range(2):
            for p in range(2):
                o = SOWN + (b*4+tt)*4 + 2*p
                k.e(f"v_cvt_pk_bf16_f32 v{d+2*b+p}, v{o}, v{o+1}")
        k.e(f"v_permlane32_swap_b32 v{d}, v{d+2}\nv_permlane32_swap_b32 v{d+1}, v{d+3}")
        k.e(f"v_permlane16_swap_b32 v{d}, v{d+2}\nv_permlane16_swap_b32 v{d+1}, v{d+3}")
        k.e(f"buffer_store_dwordx4 {v(d,4)}, v{VOUT}, {srd(OUT)}, s{OOF+tt} offen")
    if STAMPS:
        k.e("s_waitcnt vmcnt(0)"); stamp()
        k.e(f"s_cmp_lg_u32 s{WAVE}, 0\ns_cbranch_scc1 L_end\ns_waitcnt lgkmcnt(0)")
        k.e(f"s_lshl_b32 s{T0}, s2, 6\ns_add_u32 s{T0}, s{T0}, {STAMP_OFF}\nv_mov_b32 v2, 0\ns_mov_b64 exec, 1")
        for n in range(nstamp[0]):
            k.e(f"v_mov_b32 v{4+n}, s{STB+2*n}\nbuffer_store_dword v{4+n}, v2, {srd(WS)}, s{T0} offen offset:{4*n}")
    k.e("L_end:\ns_endpgm")
    k.region = "slow"
    FR = 160
    k.e(f"L_slow:\ns_mov_b32 s{T5}, 1")
    k.e(f"s_lshl_b32 s{T0}, s{R}, 19\ns_add_u32 s{T0}, s{T0}, {1536*256}")
    k.e(f"v_and_b32 v40, 15, v0\nv_lshlrev_b32 v41, 8, v40\nv_lshl_add_u32 v41, v{VQ8}, 1, v41")
    k.e(f"v_lshlrev_b32 v42, 7, v{VQ8}\nv_lshl_add_u32 v42, v40, 1, v42")
    def loadk():
        k.e(f"s_lshl_b32 s{T2}, s{T1}, 13\ns_add_u32 s{T2}, s{T2}, s{T0}\ns_add_u32 s{T3}, s{T2}, 4096")
        for n in range(8): k.e(f"buffer_load_dwordx4 {v(FR+n*4,4)}, v41, {srd(KC)}, s{T2 + n//4} offen offset:{(n%4)*64}")
        k.e("s_waitcnt vmcnt(0)")
    def qk(cneg):
        for kt in range(2):
            for ks in range(4):
                for qt in range(4):
                    d = v(sreg(0, qt, kt), 4)
                    c = d if ks > 0 else (v(NEGM+qt*4, 4) if cneg else "0")
                    k.e(f"{MFMA} {d}, {v(FR+(kt*4+ks)*4,4)}, {v(QF+(qt*4+ks)*4,4)}, {c}")
    for qt in range(4): k.e(f"v_mov_b32 v{NEGM+qt*4}, 0xff800000")
    k.e(f"s_mov_b32 s{T1}, 0\nL_slow1:")
    loadk(); qk(False)
    for qt in range(4):
        b = sreg(0, qt, 0); m = NEGM + qt*4
        for p in range(4): k.e(f"v_max3_f32 v{m}, v{m}, v{b+2*p}, v{b+2*p+1}")
    k.e(f"s_add_u32 s{T1}, s{T1}, 1\ns_cmp_lt_u32 s{T1}, 16\ns_cbranch_scc1 L_slow1")
    for qt in range(4):
        reduce4(NEGM+qt*4, NEGM+qt*4+1, "v_max_f32")
        for r in range(3, -1, -1): k.e(f"v_sub_f32 v{NEGM+qt*4+r}, 0, v{NEGM+qt*4}")
    for i in range(128): k.e(f"v_accvgpr_write_b32 a{QACC+i}, 0")
    for i in range(16): k.e(f"v_mov_b32 v{LACC+i}, 0")
    k.e(f"s_mov_b32 s{T1}, 0\nL_slow2:")
    loadk(); qk(True)
    for qt in range(4):
        b = sreg(0, qt, 0)
        for r in range(8): k.e(f"v_exp_f32 v{b+r}, v{b+r}")
        for p in range(4): k.e(f"v_cvt_pk_bf16_f32 v{b+p}, v{b+2*p}, v{b+2*p+1}")
    for dt in range(8):
        k.e(f"s_lshl_b32 s3, s{R}, 1\ns_add_u32 s3, s3, {dt+2}\ns_and_b32 s3, s3, 7\ns_lshl_b32 s3, s3, 5\nv_add_u32 v43, s3, v42")
        for e_ in range(8):
            k.e(f"buffer_load_ushort v{44+e_}, v43, {srd(VC)}, s{T2 + e_//4} offen offset:{(e_%4)*256}")
        k.e("s_waitcnt vmcnt(0)")
        for p in range(4): k.e(f"v_lshl_or_b32 v{FR+dt*4+p}, v{45+2*p}, 16, v{44+2*p}")
    for dt in range(8):
        for qt in range(4):
            d = a(QACC + (dt*4+qt)*4, 4)
            k.e(f"{MFMA} {d}, {v(FR+dt*4,4)}, {v(sreg(0, qt, 0),4)}, {d}")
    for qt in range(4): k.e(f"{MFMA} {v(LACC+qt*4,4)}, {v(ONES,4)}, {v(sreg(0, qt, 0),4)}, {v(LACC+qt*4,4)}")
    k.e("s_nop 7")
    k.e(f"s_add_u32 s{T1}, s{T1}, 1\ns_cmp_lt_u32 s{T1}, 16\ns_cbranch_scc1 L_slow2")
    k.e("s_branch L_norm")
    emit_spins()
    k.e("L_code_end:")
    print("over:", S.over, "nops:", k.nopstat)

def main():
    out = sys.argv[1] if len(sys.argv) > 1 and sys.argv[1].endswith(".s") else f"cdna_kernels/{NAME}.s"
    start(); main_body()
    for p in check_hazards(k.L): print("HAZARD", p)
    txt = "; generated by dev/gen4.py\n"
    txt += f"; @launch grid=(256,1,1) block=(256,1,1) lds={LDS_SCR+256}\n"
    txt += '.amdgcn_target "amdgcn-amd-amdhsa--gfx950"\n.text\n' + k.text()
    txt += f""".section .rodata,"a"
.p2align 6
.amdhsa_kernel {NAME}_kernel
  .amdhsa_next_free_vgpr 512
  .amdhsa_next_free_sgpr 102
  .amdhsa_accum_offset 256
  .amdhsa_group_segment_fixed_size 0
  .amdhsa_kernarg_size 104
  .amdhsa_user_sgpr_count 2
  .amdhsa_user_sgpr_kernarg_segment_ptr 1
  .amdhsa_system_sgpr_workgroup_id_x 1
.end_amdhsa_kernel
"""
    open(out, "w").write(txt)
    print("wrote", out, len(txt), "bytes", len(k.L), "lines")
main()
```

```python
import sys, struct, math
from asm2 import K, Task, Sched, emit_now, v, a, s, check_hazards

NAME = "recurrent_scan__sliding_block_cached__dense_activation_gelu__prompt"
MB = 1 << 20
XN_OFF, FL_OFF, O_OFF, H_OFF, PF_OFF, PS_OFF, STAMP_OFF = 0, 4*MB, 8*MB, 24*MB, 40*MB, 56*MB, 80*MB
WS_BYTES = 256*MB
def opt(name, default):
    return type(default)(sys.argv[sys.argv.index(name)+1]) if name in sys.argv else default
STAMPS = '--stamps' in sys.argv
XD = opt('--xd', 4)
AD = opt('--ad', 7)
TOUCH = '--touch' in sys.argv
TS = opt('--ts', 6)
TU = opt('--tu', 3)
NT = '' if '--nont' in sys.argv else ' nt'
SPIN_LIMIT = 1 << 18
def f32(x): return "0x%08x" % struct.unpack("<I", struct.pack("<f", x))[0]
MFMA = "v_mfma_f32_16x16x32_bf16"
LDS_SCR = 131072

WQ, W1, WS, B1, KC, VC, WO, W2, XS, OUT, DBG, B2 = 4, 8, 12, 16, 20, 24, 28, 32, 36, 40, 44, 48
WAVE, RB, J, R, FB, TOK64, M0W, M0KV, M0P, SKV, SW3, SX, NONCE, FLOWN, SWQ, SW1, ST1, ST2 = range(52, 70)
T0, T1, T2, T3, T4, T5 = range(70, 76)
CB = 76
TW = 78
STB = 80
WL = opt('--wl', 0)
W0 = opt('--w0', 2)
CPF = opt('--cpf', 7)
def srd(n): return f"s[{n}:{n+3}]"
VP3 = 1
VKV = 9
VL16, VFP8, VFP4 = 13, 14, 15
VLA, VLB = 58, 59
WV, WK = 16, 32
VT = 40
VCD, VCODE = 56, 57
VFST, VFVAL, VPOLL, VQ8 = 60, 61, 62, 63
G1D, G1Q, G1F, VTCH, VDUM, VTW, VTS = 64, 72, 80, 96, 97, 98, 99
QF, FACC, SB, NEGM, ONES, LACC = 64, 128, 128, 192, 208, 212
SACC = 64
OF = 192
FOWN, XRES = 192, 224
TAILK = opt('--tailk', 14)
def vl(tt): return f"v{VLA if tt < 2 else VLB}"
def to(tt): return (tt & 1)*1024
QACC, AR, XR = 0, 128, 160

k = K()
nstamp = [0]
SSET = opt('--sset', 'main')
def stamp(which='main'):
    if STAMPS and (which == SSET or which == 'all') and nstamp[0] < 11:
        n = nstamp[0]; nstamp[0] += 1
        k.e(f"{'s_memtime' if '--cyc' in sys.argv else 's_memrealtime'} s[{STB+2*n}:{STB+2*n+1}]")
spins = []
def poll_load(voff, soff): return f"buffer_load_dword v{VPOLL}, v{voff}, {srd(WS)}, s{soff} offen sc1"
def poll_check(name, voff, soff, sref, phase):
    spins.append((name, voff, soff, sref, phase))
    return [f"v_subrev_u32 v{VPOLL}, s{sref}, v{VPOLL}", f"v_cmp_le_u32 vcc, {16-phase}, v{VPOLL}", f"s_cbranch_vccnz SPIN_{name}\nBACK_{name}:"]
def emit_spins():
    for name, voff, soff, sref, phase in spins:
        k.e(f"SPIN_{name}:\ns_mov_b32 s3, {SPIN_LIMIT}\nSPINL_{name}:")
        k.e(poll_load(voff, soff)); k.e("s_waitcnt vmcnt(0)")
        k.e(f"v_subrev_u32 v{VPOLL}, s{sref}, v{VPOLL}\nv_cmp_le_u32 vcc, {16-phase}, v{VPOLL}\ns_cbranch_vccz BACK_{name}")
        k.e(f"s_sub_u32 s3, s3, 1\ns_cmp_lg_u32 s3, 0\ns_cbranch_scc1 SPINL_{name}\ns_branch BACK_{name}")
FLAG_STORE = f"buffer_store_dword v{VFVAL}, v{VFST}, {srd(WS)}, s{FLOWN} offen sc1"

def code_touch(d): return f"global_load_dword v{d}, v{VCODE}, s[{CB}:{CB+1}]"
def w_touch(): return (None, f"global_load_dword v{VDUM}, v{VTW}, s[{TW}:{TW+1}]", "pf", f"v_add_u32 v{VTW}, v{VTS}, v{VTW}")
def reduce4(x, t, op):
    k.e(f"v_mov_b32 v{t}, v{x}\nv_permlane32_swap_b32 v{x}, v{t}\n{op} v{x}, v{x}, v{t}")
    k.e(f"v_mov_b32 v{t}, v{x}\nv_permlane16_swap_b32 v{x}, v{t}\n{op} v{x}, v{x}, v{t}")
def round_bf16(d, x):
    k.e(f"v_cvt_pk_bf16_f32 v{d}, v{x}, v{x}\nv_and_b32 v{d}, 0xffff0000, v{d}")
def mk_srd(d, nbytes):
    k.e(f"s_and_b32 s{d+1}, s{d+1}, 0xffff\ns_mov_b32 s{d+2}, {nbytes}\ns_mov_b32 s{d+3}, 0x20000")

def dma_items(st):
    it = []; slot = (st % 4)*32768
    if st < 16:
        for m in range(2):
            for i in range(4):
                it.append((f"s_add_u32 m0, s{M0W}, {slot + m*16384}" if i == 0 else None,
                           f"buffer_load_dwordx4 v{G1D+4*m+i}, {srd(W1 if m else WQ)}, s{SWQ+m} offen offset:{i*1024}{NT if st < opt('--ntst', 16) else ''} lds", ("dma", st),
                           f"s_add_u32 s{SWQ+m}, s{SWQ+m}, {64*(7168 if m else 8192)}" if i == 3 else None))
    elif st < 24:
        for bl in range(4):
            b = (st - 16)*4 + bl
            isk = b == 0 or (b % 2 == 1 and b < 31)
            for i in range(2):
                post = None
                if i == 1 and (isk or b == 30): post = f"s_add_u32 s{SKV}, s{SKV}, 8192"
                it.append((f"s_add_u32 m0, s{M0KV}, {slot + bl*8192}" if i == 0 else None,
                           f"buffer_load_dwordx4 v{VKV + (0 if isk else 2) + i}, {srd(KC if isk else VC)}, s{SKV} offen offset:{i*1024} lds", ("dma", st), post))
    elif st < 39:
        for i in range(8):
            post = None
            if i == 7:
                if st == 24: post = [f"s_mul_i32 s{SW3}, s{R}, {896*2048}"]
                elif st < 31: post = [f"s_add_u32 s{SW3}, s{SW3}, {128*2048}"]
                else:
                    post = [f"s_lshl_b32 s{SW3}, s{J}, 18"] if st == 31 else []
                    post += [f"s_add_u32 s{SW3}, s{SW3}, {128*2048}", f"s_and_b32 s{SW3}, s{SW3}, 0x1fffff", f"s_or_b32 s{SW3}, s{SW3}, s{SWB}"]
            it.append((f"s_add_u32 m0, s{M0O if st == 24 else M0P}, {slot + (i//4)*4096}" if i % 4 == 0 else None,
                       f"buffer_load_dwordx4 v{VP3+i}, {srd(W2 if 25 <= st < 32 else WO)}, s{SW3} offen offset:{(i%4)*1024}{' nt' if '--p3nt' in sys.argv else ''} lds", ("dma", st), post))
    return it
def xreg(kap, tt): return a(XR + (kap % 6)*16 + tt*4, 4)
def x_items(kap):
    if kap >= 32: return []
    return [(None, f"buffer_load_dwordx4 {xreg(kap, tt)}, {vl(tt)}, {srd(WS)}, s{SX} offen offset:{to(tt)} sc1", ("x", kap),
             f"s_add_u32 s{SX}, s{SX}, 4096" if tt == 3 else None) for tt in range(4)]
SXO, SOB, SWB, M0O = 4, 5, 69, 19
NACT = 56
RING = [XR + 16*i for i in range(6)] + [96, 112]
def actreg(n, tt):
    return a((RING[n % 8] if n < NACT - 6 else (n - (NACT - 6))*16) + tt*4, 4)
def act_items(n):
    if n >= NACT: return []
    post = [f"s_add_u32 s{SX}, s{SX}, 4096"]
    if n == 27: post = [f"s_add_u32 s{SX}, s{SOB}, 16384"]
    if n >= 27 and n % 4 == 3: post += [f"s_and_b32 s{SX}, s{SX}, 0x1ffff", f"s_or_b32 s{SX}, s{SX}, s{SXO}"]
    return [(None, f"buffer_load_dwordx4 {actreg(n, tt)}, {vl(tt)}, {srd(WS)}, s{SX} offen offset:{to(tt)} sc1", ("act", n), post if tt == 3 else None) for tt in range(4)]

def facc(ft, tt): return FACC + (ft*16 if ft < 7 else 104) + tt*4
def start():
    k.region = "start"
    k.e(f".globl {NAME}_kernel\n.p2align 8\n.type {NAME}_kernel,@function\n{NAME}_kernel:")
    k.e("s_cmp_lt_u32 s2, 256\ns_cbranch_scc1 L_go\ns_endpgm\nL_go:")
    stamp()
    k.e(f"s_getpc_b64 s[{CB}:{CB+1}]\nL_pc:")
    for d, off in ((XS, 0), (WQ, 24), (W1, 48), (WS, 96), (DBG, 88)):
        k.e(f"s_load_dwordx2 s[{d}:{d+1}], s[0:1], {off}")
    k.e(f"v_lshrrev_b32 v1, 6, v0\nv_and_b32 v0, 63, v0\nv_readfirstlane_b32 s{WAVE}, v1")
    k.e(f"s_and_b32 s{T0}, s2, 7\ns_lshr_b32 s{T1}, s2, 3")
    k.e(f"s_and_b32 s{RB}, s{T0}, 1\ns_lshl_b32 s{RB}, s{RB}, 2\ns_and_b32 s{T2}, s{T1}, 3\ns_add_u32 s{RB}, s{RB}, s{T2}")
    k.e(f"s_lshr_b32 s{R}, s{T0}, 1\ns_lshr_b32 s{FB}, s{T1}, 2\ns_lshl_b32 s{J}, s{R}, 3\ns_add_u32 s{J}, s{J}, s{FB}")
    k.e(f"s_lshl_b32 s{TOK64}, s{RB}, 2\ns_add_u32 s{TOK64}, s{TOK64}, s{WAVE}")
    k.e(f"s_lshl_b32 s{M0W}, s{WAVE}, 12\ns_lshl_b32 s{M0KV}, s{WAVE}, 11\ns_lshl_b32 s{M0P}, s{WAVE}, 13")
    k.e(f"v_and_b32 v40, 7, v0\nv_lshrrev_b32 v41, 3, v0\nv_lshlrev_b32 v42, 11, v40\nv_lshl_add_u32 v42, v41, 4, v42")
    k.e(f"s_lshl_b32 s{T0}, s{RB}, 19\ns_lshl_b32 s{T1}, s{J}, 14\ns_add_u32 s{T0}, s{T0}, s{T1}\ns_lshl_b32 s{T1}, s{WAVE}, 9\ns_add_u32 s{T0}, s{T0}, s{T1}")
    k.e("s_waitcnt lgkmcnt(0)")
    mk_srd(XS, 4*MB)
    RAW, X = 128, 144
    for i in range(4): k.vmem(f"buffer_load_dwordx4 {v(RAW+4*i,4)}, v42, {srd(XS)}, s{T0} offen offset:{128*i}", ("ln", i))
    k.e(f"s_lshr_b32 s{T1}, s2, 1\ns_and_b32 s{T1}, s{T1}, 12\ns_add_u32 s{T1}, s{T1}, s{WAVE}\ns_lshl_b32 s{T1}, s{T1}, 13")
    k.e(f"v_lshlrev_b32 v{VCODE}, 7, v0\nv_add_u32 v{VCODE}, s{T1}, v{VCODE}\nv_min_u32 v{VCODE}, L_code_end-L_pc-4, v{VCODE}")
    if CPF & 1: k.vmem(code_touch(VDUM), "cpf")
    for d, off in ((B1, 56), (KC, 8), (VC, 16), (WO, 32), (W2, 64), (OUT, 80), (B2, 72)):
        k.e(f"s_load_dwordx2 s[{d}:{d+1}], s[0:1], {off}")
    k.e(f"s_lshl_b32 s{T1}, s2, 2\ns_add_u32 s{T1}, s{T1}, s{WAVE}\ns_cmp_lt_u32 s{T1}, 512\ns_cselect_b64 s[{TW}:{TW+1}], s[{WQ}:{WQ+1}], s[{W1}:{W1+1}]")
    k.e(f"s_cselect_b32 s{T2}, 8, 7\ns_lshl_b32 s{T3}, s{T2}, 6\ns_sub_u32 s{T3}, s{T3}, 1\ns_lshl_b32 s{T2}, s{T2}, 16\ns_and_b32 s{T1}, s{T1}, 511\ns_min_u32 s{T1}, s{T1}, s{T3}\ns_lshl_b32 s{T1}, s{T1}, 10")
    k.e(f"s_mul_i32 s{T3}, s{T2}, {W0}\ns_add_u32 s{T1}, s{T1}, s{T3}\nv_mov_b32 v{VTS}, s{T2}\nv_lshlrev_b32 v{VTW}, 4, v0\nv_add_u32 v{VTW}, s{T1}, v{VTW}")
    mk_srd(WQ, 1024*8192); mk_srd(W1, 1024*7168); mk_srd(WS, WS_BYTES); mk_srd(DBG, 256)
    k.e(f"v_lshrrev_b32 v44, 4, v0\nv_and_b32 v45, 15, v0")
    k.e(f"s_lshl_b32 s{T1}, s{WAVE}, 4\nv_add_u32 v46, s{T1}, v44")
    k.e(f"s_lshl_b32 s{T2}, s{J}, 8\ns_and_b32 s{T5}, s{J}, 1\ns_mul_i32 s{T3}, s{J}, 224\ns_lshl_b32 s{T4}, s{T5}, 5\ns_sub_u32 s{T3}, s{T3}, s{T4}\ns_movk_i32 s{T4}, 7168")
    if '--e1' in sys.argv: k.e(f"s_and_b32 s{T3}, s{T3}, 0xffffff80")
    k.e(f"v_mul_lo_u32 v51, v46, s{T4}")
    for h in range(2):
        k.e(f"v_or_b32 v47, {4*h}, v44\nv_lshlrev_b32 v47, 1, v47\nv_xor_b32 v47, v45, v47\nv_lshlrev_b32 v47, 4, v47")
        k.e(f"v_lshl_add_u32 v48, v46, 13, v47\nv_add_u32 v48, s{T2}, v48\nv_add3_u32 v50, v47, v51, s{T3}")
        for i in (2*h, 2*h+1): k.e(f"v_add_u32 v{G1D+i}, {i*(4*8192-1024)}, v48\nv_add_u32 v{G1D+4+i}, {i*(4*7168-1024)}, v50")
    k.e(f"s_mov_b32 s{SWQ}, 0\ns_mov_b32 s{SW1}, 0")
    k.e(f"s_lshl_b32 s{FLOWN}, s{RB}, 12\ns_add_u32 s{FLOWN}, s{FLOWN}, {FL_OFF}")
    k.e(f"s_or_b32 s{T1}, s{J}, s{WAVE}\ns_cmp_lg_u32 s{T1}, 0\ns_cbranch_scc1 L_nolead")
    k.e(f"v_and_b32 v52, 31, v0\nv_lshlrev_b32 v52, 7, v52")
    k.e(f"buffer_load_dword v53, v52, {srd(WS)}, s{FLOWN} offen sc1\ns_waitcnt vmcnt(0)")
    k.e(f"v_readfirstlane_b32 s{T1}, v53")
    k.e(f"L_lead:\ns_add_u32 s{T1}, s{T1}, 16\ns_cmp_eq_u32 s{T1}, 0\ns_cbranch_scc1 L_lead")
    k.e(f"v_subrev_u32 v54, s{T1}, v53\nv_cmp_gt_u32 vcc, 16, v54\ns_cbranch_vccnz L_lead")
    k.e(f"v_mov_b32 v54, s{T1}\nv_mov_b32 v55, 0\ns_lshl_b32 s{T1}, s{RB}, 5")
    k.e(f"buffer_store_dword v54, v55, {srd(DBG)}, s{T1} offen sc1")
    k.e("L_nolead:")
    emit_now(k, dma_items(0))
    if WL: emit_now(k, [w_touch() for _ in range(W0, 2 + WL)])
    k.e("s_waitcnt lgkmcnt(0)")
    mk_srd(B1, 7168); mk_srd(KC, 2*MB); mk_srd(VC, 2*MB); mk_srd(WO, 4096*2048); mk_srd(W2, 3584*2048); mk_srd(OUT, 4*MB); mk_srd(B2, 2048)
    k.e(f"v_lshlrev_b32 v{VL16}, 4, v0\nv_lshlrev_b32 v{VFP8}, 7, v40\nv_and_b32 v{VFP4}, 3, v0\nv_lshlrev_b32 v{VFP4}, 10, v{VFP4}")
    k.e(f"s_lshl_b32 s{T1}, s{WAVE}, 2\ns_add_u32 s{T1}, s{T1}, {LDS_SCR}\nv_lshlrev_b32 v43, 4, v40\nv_add_u32 v52, s{T1}, v43\nv_add_u32 v43, {LDS_SCR}, v43")
    for i in range(4):
        k.wait_vm([("ln", i)])
        for d in range(4):
            r = RAW + 4*i + d; o = X + 8*i + 2*d
            k.e(f"v_lshlrev_b32 v{o}, 16, v{r}\nv_and_b32 v{o+1}, 0xffff0000, v{r}")
    A_, B_, MEAN = 56, 51, 53
    k.e(f"v_add_f32 v{A_}, v{X}, v{X+1}\nv_add_f32 v{B_}, v{X+2}, v{X+3}")
    for i in range(4, 32, 2): k.e(f"v_add_f32 v{A_}, v{A_}, v{X+i}\nv_add_f32 v{B_}, v{B_}, v{X+i+1}")
    def allsum(off):
        k.e(f"v_add_f32 v{A_}, v{A_}, v{B_}")
        k.e(f"v_add_f32_dpp v{A_}, v{A_}, v{A_} row_ror:8 row_mask:0xf bank_mask:0xf")
        reduce4(A_, B_, "v_add_f32")
        k.e(f"ds_write_b32 v52, v{A_} offset:{off}\ns_waitcnt lgkmcnt(0)\ns_barrier")
        k.e(f"ds_read_b128 v[44:47], v43 offset:{off}\ns_waitcnt lgkmcnt(0)")
        k.e(f"v_add_f32 v44, v44, v45\nv_add_f32 v46, v46, v47\nv_add_f32 v{A_}, v44, v46\nv_mul_f32 v{A_}, {f32(1/1024)}, v{A_}")
    allsum(0)
    k.e(f"v_mov_b32 v{MEAN}, v{A_}\nv_mov_b32 v{A_}, 0\nv_mov_b32 v{B_}, 0")
    for i in range(0, 32, 2):
        k.e(f"v_sub_f32 v48, v{X+i}, v{MEAN}\nv_sub_f32 v49, v{X+i+1}, v{MEAN}\nv_fmac_f32 v{A_}, v48, v48\nv_fmac_f32 v{B_}, v49, v49")
    allsum(128)
    round_bf16(MEAN, MEAN); round_bf16(A_, A_)
    k.e(f"v_add_f32 v{A_}, {f32(1e-5)}, v{A_}"); round_bf16(A_, A_)
    k.e(f"v_sqrt_f32 v{A_}, v{A_}"); round_bf16(A_, A_)
    k.e(f"v_rcp_f32 v{A_}, v{A_}")
    k.e(f"s_lshl_b32 s{T0}, s{RB}, 2\ns_add_u32 s{T0}, s{T0}, s{R}\ns_lshl_b32 s{T0}, s{T0}, 17\ns_lshl_b32 s{T1}, s{WAVE}, 15\ns_add_u32 s{T0}, s{T0}, s{T1}")
    k.e(f"s_bfe_u32 s{T1}, s{J}, 0x20001\ns_lshl_b32 s{T1}, s{T1}, 10\ns_add_u32 s{T0}, s{T0}, s{T1}\ns_lshl_b32 s{T1}, s{T5}, 7\ns_add_u32 s{T0}, s{T0}, s{T1}")
    k.e("v_lshrrev_b32 v50, 2, v41\nv_and_b32 v51, 3, v41\nv_lshlrev_b32 v50, 12, v50\nv_lshl_add_u32 v50, v51, 8, v50\nv_lshl_add_u32 v50, v40, 4, v50")
    for i in range(4):
        for d in range(4):
            o = X + 8*i + 2*d; r = RAW + 4*i + d
            k.e(f"v_sub_f32 v48, v{o}, v{MEAN}\nv_sub_f32 v49, v{o+1}, v{MEAN}\nv_cvt_pk_bf16_f32 v48, v48, v49")
            k.e(f"v_and_b32 v49, 0xffff0000, v48\nv_lshlrev_b32 v48, 16, v48\nv_mul_f32 v48, v48, v{A_}\nv_mul_f32 v49, v49, v{A_}")
            k.e(f"v_cvt_pk_bf16_f32 v{r}, v48, v49")
        k.vmem(f"buffer_store_dwordx4 {v(RAW+4*i,4)}, v50, {srd(WS)}, s{T0} offen sc1", "lnst")
        if i < 3: k.e(f"s_add_u32 s{T0}, s{T0}, 8192")
    stamp('st')
    k.e(f"v_mov_b32 v55, 0\ns_lshl_b32 s{T4}, s{RB}, 5")
    NLOAD = f"buffer_load_dword v54, v55, {srd(DBG)}, s{T4} offen sc1"
    k.vmem(NLOAD, "nonce")
    BI = 112
    k.e(f"v_lshrrev_b32 v44, 4, v0\nv_lshlrev_b32 v{VQ8}, 3, v44\nv_add_u32 v46, s{T3}, v{VQ8}")
    k.e(f"s_lshl_b32 s{T0}, s{T5}, 6\ns_xor_b32 s{T1}, s{T5}, 1\ns_mul_i32 s{T1}, s{T1}, 192")
    for i in range(6): k.vmem(f"buffer_load_dwordx2 {v(BI+2*i,2)}, v46, {srd(B1)}, s{T0} offen offset:{32*i}", "bias")
    for i in range(2): k.vmem(f"buffer_load_dwordx2 {v(BI+12+2*i,2)}, v46, {srd(B1)}, s{T1} offen offset:{32*i}", "bias")
    emit_now(k, dma_items(1))
    k.e("v_bfe_u32 v45, v0, 2, 2\nv_lshl_add_u32 v46, v44, 3, v45\nv_lshlrev_b32 v46, 8, v46\nv_and_b32 v47, 3, v0")
    k.e("v_and_b32 v48, 1, v44\nv_lshl_or_b32 v48, v48, 2, v45")
    k.e("v_lshl_add_u32 v49, v47, 3, v46\nv_lshlrev_b32 v51, 1, v48\nv_xor_b32 v51, v51, v47")
    k.e(f"s_lshl_b32 s{T0}, s{T5}, 1")
    for t in range(8):
        k.e(f"s_add_u32 s{T1}, s{T0}, {t}\ns_and_b32 s{T1}, s{T1}, 7")
        k.e(f"v_xor_b32 v50, s{T1}, v48\nv_lshl_add_u32 v{G1F+t}, v50, 5, v49\nv_add_u32 v{G1F+8+t}, 0x10000, v{G1F+t}")
    k.e(f"s_lshl_b32 s{T0}, s{T5}, 11\nv_add_u32 v{VLA}, s{T0}, v{VL16}\nv_xor_b32 v{VLB}, 2048, v{VLA}")
    for t in range(4): k.e(f"v_xor_b32 v50, {4*t}, v51\nv_lshl_add_u32 v{G1Q+t}, v50, 4, v46\nv_add_u32 v{G1Q+4+t}, 0x10000, v{G1Q+t}")
    k.e("v_and_b32 v45, 15, v0\nv_lshlrev_b32 v46, 8, v45\nv_lshlrev_b32 v48, 1, v40\nv_xor_b32 v48, v48, v44")
    for t in range(4): k.e(f"v_xor_b32 v50, {4*t}, v48\nv_lshl_add_u32 v{WK+t}, v50, 4, v46\nv_add_u32 v{WK+4+t}, 0x10000, v{WK+t}")
    k.e("v_lshrrev_b32 v48, 2, v0\nv_lshlrev_b32 v46, 8, v48\nv_lshl_add_u32 v46, v47, 3, v46\nv_and_b32 v48, 7, v48")
    k.e(f"s_lshl_b32 s{T0}, s{R}, 1\ns_add_u32 s{T0}, s{T0}, 2")
    for t in range(8):
        k.e(f"s_add_u32 s{T1}, s{T0}, {t}\ns_and_b32 s{T1}, s{T1}, 7")
        k.e(f"v_xor_b32 v50, s{T1}, v48\nv_lshl_add_u32 v{WV+t}, v50, 5, v46\nv_add_u32 v{WV+8+t}, 0x10000, v{WV+t}")
    k.e(f"s_lshl_b32 s{T0}, s{R}, 19\ns_add_u32 s{T0}, s{T0}, s{M0KV}\ns_add_u32 s{T0}, s{T0}, {1536*256}")
    k.e(f"s_lshl_b32 s{T1}, s{WAVE}, 16\ns_lshl_b32 s{T2}, s{FB}, 8\ns_add_u32 s{T1}, s{T1}, s{T2}")
    for h in range(2):
        k.e(f"v_or_b32 v47, {4*h}, v44\nv_lshlrev_b32 v47, 1, v47\nv_xor_b32 v47, v45, v47\nv_lshlrev_b32 v47, 4, v47")
        k.e(f"v_lshl_add_u32 v48, v44, 8, v47\nv_add_u32 v{VKV+h}, s{T0}, v48\nv_subrev_u32 v{VKV+2+h}, 16384, v{VKV+h}")
        k.e(f"v_lshl_add_u32 v48, v44, 11, v47\nv_add_u32 v48, s{T1}, v48")
        for i in range(h, 8, 2): k.e(f"v_add_u32 v{VP3+i}, {i*8192 - (i%4)*1024}, v48")
    k.e(f"s_mov_b32 s{SKV}, 0\ns_lshl_b32 s{SW3}, s{J}, 18")
    k.e(f"s_lshl_b32 s{SX}, s{TOK64}, 17")
    k.e(f"s_lshl_b32 s{ST1}, s2, 2\ns_add_u32 s{ST1}, s{ST1}, s{WAVE}\ns_mul_i32 s{ST2}, s{ST1}, 7168\ns_lshl_b32 s{ST1}, s{ST1}, 13\nv_lshlrev_b32 v{VTCH}, 3, v0")
    k.e(f"v_or_b32 v47, s{WAVE}, v0\nv_cmp_eq_u32 vcc, 0, v47\nv_bfrev_b32 v48, 1\nv_cndmask_b32 v{VFST}, v48, 0, vcc")
    k.e(f"s_lshl_b32 s{T0}, s{WAVE}, 10\ns_add_u32 s{T0}, s{T0}, s{FLOWN}")
    k.e(f"s_lshl_b32 s{T1}, s{J}, 7\ns_add_u32 s{FLOWN}, s{FLOWN}, s{T1}")
    k.wait_vm(["lnst", "nonce"])
    k.e(f"s_mov_b32 s3, {SPIN_LIMIT}")
    k.e(f"L_nonce:\nv_readfirstlane_b32 s{NONCE}, v54\ns_cmp_lg_u32 s{NONCE}, 0\ns_cbranch_scc1 L_nonce_ok")
    k.e(f"{NLOAD}\ns_waitcnt vmcnt(0)\ns_sub_u32 s3, s3, 1\ns_cmp_lg_u32 s3, 0\ns_cbranch_scc1 L_nonce")
    k.e("L_nonce_ok:\ns_barrier")
    k.e(f"s_add_u32 s{T1}, s{NONCE}, 1\nv_mov_b32 v{VFVAL}, s{T1}")
    k.vmem(FLAG_STORE, "flag")
    stamp('st')
    k.vmem(poll_load(VFP8, T0), ("poll", "xn"))
    k.wait_vm(["bias"])
    for ft in range(8):
        b = facc(ft, 0)
        k.e(f"v_lshlrev_b32 v{b}, 16, v{BI+2*ft}\nv_and_b32 v{b+1}, 0xffff0000, v{BI+2*ft}")
        k.e(f"v_lshlrev_b32 v{b+2}, 16, v{BI+1+2*ft}\nv_and_b32 v{b+3}, 0xffff0000, v{BI+1+2*ft}")
        for tt in range(1, 4 if ft < 6 else 2):
            for r in range(4): k.e(f"v_mov_b32 v{b+4*tt+r}, v{b+r}")
    k.wait_vm([("poll", "xn")])
    for t in poll_check("xn", VFP8, T0, T1, 1): k.e(t)
    stamp('st')
    for kap in range(XD): emit_now(k, x_items(kap))

EORD = (3, 0, 1, 2)
EARLY = '--noearly' not in sys.argv
def build_frags():
    frags = []
    def add(st, reads): frags.append(dict(stage=st, reads=reads))
    for st in range(16):
        w = 1 if (st % 4) >= 2 else 0
        for ks in range(2):
            for ft in range(16):
                if ft < 8: reg, off = G1Q + 4*w + ft//2, (st % 2)*32768 + ks*8192 + (ft % 2)*8
                else: reg, off = G1F + 8*w + ft - 8, (st % 2)*32768 + 16384 + ks*8192
                add(st, lambda r, reg=reg, off=off: [f"ds_read_b64_tr_b16 {a(r,2)}, v{reg} offset:{off}", f"ds_read_b64_tr_b16 {a(r+2,2)}, v{reg} offset:{off+1024}"])
    def trw(st, base, t):
        w = 1 if (st % 4) >= 2 else 0; off = (st % 2)*32768 + base
        add(st, lambda r, reg=WV + 8*w + t, off=off: [f"ds_read_b64_tr_b16 {a(r,2)}, v{reg} offset:{off}", f"ds_read_b64_tr_b16 {a(r+2,2)}, v{reg} offset:{off+4096}"])
    for b in range(32):
        st = 16 + b//4; w = 1 if (st % 4) >= 2 else 0
        isk = b == 0 or (b % 2 == 1 and b < 31)
        for n in range(8):
            if isk:
                kt, ks = divmod(n, 4)
                add(st, lambda r, reg=WK + 4*w + ks, off=(st % 2)*32768 + (b % 4)*8192 + kt*4096: [f"ds_read_b128 {a(r,4)}, v{reg} offset:{off}"])
            else: trw(st, (b % 4)*8192, n)
    for m in EORD:
        for ft in range(8): trw(24, m*8192, ft)
    t0 = NACT - TAILK
    order = [(n, ft) for n in range(t0) for ft in range(8)]
    order += [(n, ft) for n in range(t0, NACT - 4) for ft in range(6)]
    order += [(n, ft) for p in range(3) for n in range(NACT - 4, NACT) for ft in (2*p, 2*p+1)]
    order += [(n, ft) for n in range(t0, NACT) for ft in (6, 7)]
    for n, ft in order: trw(25 + n//4, (n % 4)*8192, ft)
    return frags, order

def main_body():
    frags, order = build_frags()
    S = Sched(k, frags, AR)
    bar_hooks = {}
    def mk_after(st):
        def f():
            if not (EARLY and st >= 24): S.q['d'].extend(dma_items(st + 2))
            for h in bar_hooks.get(st, []): h()
        return f
    first_of = {}
    for i, fr in enumerate(frags):
        if fr["first"]:
            first_of[fr["stage"]] = fr
            if fr["stage"] > 0: fr["after_bar"] = mk_after(fr["stage"])
    def mid_barrier(st):
        if EARLY and st + 3 < 39:
            k.e("s_barrier"); S.q['d'].extend(dma_items(st + 3))
    def flag_tasks(phase, sref):
        return [Task(f"s_add_u32 s{sref}, s{NONCE}, {phase}"), Task(f"v_mov_b32 v{VFVAL}, s{sref}"), Task(FLAG_STORE, tag="flag")]
    def poll_tasks(name, voff, soff, sref, phase, then):
        c = poll_check(name, voff, soff, sref, phase)
        def fin():
            k.e(c[2]); then()
        return [Task(fn=lambda: k.wait_vm([("poll", name)])), Task(c[0]), Task(c[1]), Task(fn=fin)]
    k.region = "gemm1"
    G1VQ = {0: 'd', 1: 'x', 3: 'd', 4: 'x', 6: 'p', 7: 'd', 8: 'x', 10: 'd', 11: 'x', 12: 'p', 13: 'd'}
    S.q['d'].extend(dma_items(2))
    S.prime(S.look)
    stamp()
    for kap in range(32):
        S.q['x'].extend(x_items(kap + XD))
        if kap in (0, 1, 2, 4, 6, 8, 12, 16, 20, 24, 28): stamp('g1')
        if TOUCH and kap < 30:
            sr, so = (WO, ST1) if kap < 16 else (W2, ST2)
            S.q['p'].append((None, f"buffer_load_dword v{VDUM}, v{VTCH}, {srd(sr)}, s{so} offen", "pf", f"s_add_u32 s{so}, s{so}, 512"))
        if WL and kap % 2 == 0 and kap//2 + 2 + WL < 16: S.q['p'].append(w_touch())
        if CPF & 2 and kap == 30: S.q['p'].append((None, code_touch(VDUM), "pf", None))
        for ft in range(16):
            def mf(ar, ft=ft, kap=kap):
                out = []
                for tt in range(4 if ft < 14 else 2):
                    acc = a(QACC + (ft*4+tt)*4, 4) if ft < 8 else v(facc(ft-8, tt), 4)
                    out.append(f"{MFMA} {acc}, {a(ar,4)}, {xreg(kap, tt)}, {'0' if kap == 0 and ft < 8 else acc}")
                return out
            pre = (lambda kap=kap: k.wait_vm([("x", kap)])) if ft == 0 else None
            S.group(mf, pre=pre, nextpre=1 if ft == 15 else 0, vq=G1VQ.get(ft))
    S.flush_side()
    stamp()
    k.region = "gelu"
    CQ, CG, C1 = 6, 8, 10
    qs = (128 ** -0.5) * math.log2(math.e)
    k.e(f"s_mov_b32 s{CQ}, {f32(qs)}\ns_mov_b32 s{CQ+1}, {f32(qs)}")
    k.wait_vm(["pf"])
    T = VT
    TV = VPOLL
    TW2 = T5
    if TS: k.e(f"v_lshlrev_b32 v{TV}, {TS}, v0\ns_mov_b32 s3, s{ST1}\ns_mov_b32 s{TW}, s{ST2}")
    for qt in range(4):
        for ks in range(4):
            for b in range(2):
                src = QACC + ((2*ks+b)*4 + qt)*4
                for r in range(4): k.e(f"v_accvgpr_read_b32 v{T+4*b+r}, a{src+r}")
            for p in range(4): k.e(f"v_pk_mul_f32 {v(T+2*p,2)}, {v(T+2*p,2)}, s[{CQ}:{CQ+1}]")
            for p in range(4): k.e(f"v_cvt_pk_bf16_f32 v{QF+(qt*4+ks)*4+p}, v{T+2*p}, v{T+2*p+1}")
    kk = 2*math.sqrt(2/math.pi)*math.log2(math.e)
    k.e(f"s_mov_b32 s{CG}, {f32(-0.044715*kk)}\ns_mov_b32 s{CG+1}, {f32(-0.044715*kk)}")
    k.e(f"v_mov_b32 v{T+8}, {f32(-kk)}\nv_mov_b32 v{T+9}, {f32(-kk)}")
    k.e(f"s_mov_b32 s{C1}, 1.0\ns_mov_b32 s{C1+1}, 1.0")
    k.e(f"s_mul_i32 s{SX}, s{TOK64}, 458752\ns_add_u32 s{SX}, s{SX}, {H_OFF}")
    k.e(f"s_lshr_b32 s{T1}, s{J}, 1\ns_mul_i32 s{T1}, s{T1}, {7*4096}\ns_add_u32 s{T0}, s{SX}, s{T1}")
    k.e(f"s_and_b32 s{T5}, s{J}, 1\ns_add_u32 s{T2}, s{T0}, {3*4096}")
    k.e(f"s_lshl_b32 s{T1}, s{T5}, 14\ns_add_u32 s{T0}, s{T0}, s{T1}")
    k.e(f"s_mul_i32 s{T1}, s{R}, {28*4096}\ns_add_u32 s{SX}, s{SX}, s{T1}")
    k.e(f"s_lshl_b32 s{SXO}, s{TOK64}, 19\ns_add_u32 s{SXO}, s{SXO}, {O_OFF}\ns_lshl_b32 s{T1}, s{J}, 14\ns_add_u32 s{SOB}, s{SXO}, s{T1}")
    k.e(f"s_lshl_b32 s{T1}, s{R}, 17\ns_add_u32 s{SXO}, s{SXO}, s{T1}")
    def gelu4(x, dst, t):
        for p in range(2): k.e(f"v_pk_mul_f32 {v(t+2*p,2)}, {v(x+2*p,2)}, {v(x+2*p,2)}")
        for p in range(2): k.e(f"v_pk_fma_f32 {v(t+2*p,2)}, {v(t+2*p,2)}, s[{CG}:{CG+1}], {v(T+8,2)}")
        for p in range(2): k.e(f"v_pk_mul_f32 {v(t+2*p,2)}, {v(t+2*p,2)}, {v(x+2*p,2)}")
        for r in range(4): k.e(f"v_exp_f32 v{t+r}, v{t+r}")
        for p in range(2): k.e(f"v_pk_add_f32 {v(t+2*p,2)}, {v(t+2*p,2)}, s[{C1}:{C1+1}]")
        for r in range(4): k.e(f"v_rcp_f32 v{t+r}, v{t+r}")
        for p in range(2): k.e(f"v_pk_mul_f32 {v(t+2*p,2)}, {v(t+2*p,2)}, {v(x+2*p,2)}")
        for p in range(2): k.e(f"v_cvt_pk_bf16_f32 v{dst+p}, v{t+2*p}, v{t+2*p+1}")
    n = 0
    for m in range(4):
        for tt in range(4 if m < 3 else 2):
            d = 240 + (n % 4)*4; n += 1
            gelu4(facc(2*m, tt), d, T); gelu4(facc(2*m+1, tt), d+2, T+4)
            k.vmem(f"buffer_store_dwordx4 {v(d,4)}, {vl(tt)}, {srd(WS)}, s{T0 if m < 3 else T2} offen offset:{to(tt)} sc1", "hst")
        if m < 2: k.e(f"s_add_u32 s{T0}, s{T0}, 4096")
    FLG8, FLG4 = 6, 7
    k.e(f"s_lshl_b32 s{T0}, s{RB}, 12\ns_add_u32 s{T0}, s{T0}, {FL_OFF}\ns_lshl_b32 s{T1}, s{R}, 10\ns_add_u32 s{FLG8}, s{T0}, s{T1}\ns_lshl_b32 s{T1}, s{FB}, 7\ns_add_u32 s{FLG4}, s{T0}, s{T1}")
    OST = 8
    PST, PLD = 66, 16
    k.e(f"s_lshl_b32 s{T0}, s{RB}, 3\ns_add_u32 s{T0}, s{T0}, s{FB}\ns_lshl_b32 s{T0}, s{T0}, 18\ns_add_u32 s{T0}, s{T0}, s{M0W}\ns_add_u32 s{T0}, s{T0}, {PF_OFF}")
    for m in range(4):
        k.e(f"s_add_u32 s{T1}, s{R}, {m+1}\ns_and_b32 s{T1}, s{T1}, 3\ns_lshl_b32 s{T2}, s{T1}, 12\ns_add_u32 s{OST+m}, s{SOB}, s{T2}")
        if m < 3:
            k.e(f"s_lshl_b32 s{T2}, s{T1}, 16\ns_lshl_b32 s{T3}, s{R}, 14\ns_add_u32 s{T2}, s{T2}, s{T3}\ns_add_u32 s{PST+m}, s{T0}, s{T2}")
            k.e(f"s_lshl_b32 s{T2}, s{R}, 16\ns_lshl_b32 s{T3}, s{T1}, 14\ns_add_u32 s{T2}, s{T2}, s{T3}\ns_add_u32 s{PLD+m}, s{T0}, s{T2}")
    k.e(f"s_lshl_b32 s{SWB}, s{R}, 21\ns_sub_u32 s{M0O}, s{WAVE}, s{R}\ns_add_u32 s{M0O}, s{M0O}, 3\ns_and_b32 s{M0O}, s{M0O}, 3\ns_lshl_b32 s{M0O}, s{M0O}, 13")
    COL, OOF = M0W, DBG
    k.e(f"s_lshl_b32 s{COL}, s{FB}, 8\ns_lshl_b32 s{T0}, s{R}, 6\ns_add_u32 s{COL}, s{COL}, s{T0}")
    k.e(f"s_lshl_b32 s{T0}, s{TOK64}, 17\ns_add_u32 s{T0}, s{T0}, s{COL}\ns_lshl_b32 s{T1}, s{T5}, 16\ns_add_u32 s{OOF}, s{T0}, s{T1}")
    for tt in range(1, 4): k.e(f"s_xor_b32 s{OOF+tt}, s{OOF}, {tt*32768}")
    k.region = "attn"
    stamp()
    first_of[18]["also"] = ["hst"]
    bar_hooks[18] = [lambda: S.tasks.extend(flag_tasks(2, T4))]
    for r in range(4): k.e(f"v_mov_b32 v{ONES+r}, 0x3f803f80")
    def sreg(u, qt, kt): return SB + (u % 2)*32 + qt*8 + kt*4
    cnt = [0]
    def aq():
        cnt[0] += 1
        if frags[S.f] is first_of[23]: mid_barrier(23)
        return ['d', 'x'] if cnt[0] % 2 == 0 else None
    def qk_groups(u):
        for kt in range(2):
            for ks in range(4):
                def mf(ar, kt=kt, ks=ks):
                    out = []
                    for qt in range(4):
                        d = v(sreg(u, qt, kt), 4)
                        c = d if ks > 0 else ("0" if u < 2 else v(NEGM + qt*4, 4))
                        out.append(f"{MFMA} {d}, {a(ar,4)}, {v(QF+(qt*4+ks)*4,4)}, {c}")
                    return out
                S.group(mf, vq=aq(), gv=3 if cnt[0] % 2 else 2, rdsplit=False)
    def soft_tasks(u):
        tk = []
        def t(x): tk.append(Task(x, mark=("s", u)))
        if u == 0:
            for qt in range(4):
                b = sreg(0, qt, 0); m = NEGM + qt*4
                t(f"v_max3_f32 v{m}, v{b}, v{b+1}, v{b+2}"); t(f"v_max3_f32 v{m}, v{m}, v{b+3}, v{b+4}")
                t(f"v_max3_f32 v{m}, v{m}, v{b+5}, v{b+6}"); t(f"v_max_f32 v{m}, v{m}, v{b+7}")
            for sw in ("32", "16"):
                for qt in range(4): t(f"v_mov_b32 v{NEGM+qt*4+1}, v{NEGM+qt*4}")
                for qt in range(4): t(f"v_permlane{sw}_swap_b32 v{NEGM+qt*4}, v{NEGM+qt*4+1}")
                for qt in range(4): t(f"v_max_f32 v{NEGM+qt*4}, v{NEGM+qt*4}, v{NEGM+qt*4+1}")
            for qt in range(4):
                for r in range(3, -1, -1): t(f"v_sub_f32 v{NEGM+qt*4+r}, 0, v{NEGM+qt*4}")
        for qt in range(4):
            b = sreg(u, qt, 0)
            for p in range(4):
                for r in (2*p, 2*p+1):
                    if u < 2: t(f"v_add_f32 v{b+r}, v{b+r}, v{NEGM+qt*4}")
                    t(f"v_exp_f32 v{b+r}, v{b+r}")
                t(f"v_cvt_pk_bf16_f32 v{b+p}, v{b+2*p}, v{b+2*p+1}")
        return tk
    def pv_groups(u):
        first = u == 0
        for dt in range(8):
            def mf(ar, dt=dt):
                return [f"{MFMA} {a(QACC + (dt*4+qt)*4, 4)}, {a(ar,4)}, {v(sreg(u, qt, 0),4)}, {'0' if first else a(QACC + (dt*4+qt)*4, 4)}" for qt in range(4)]
            S.group(mf, vq=aq(), gv=3 if cnt[0] % 2 else 2, rdsplit=False)
        S.group(lambda _: [f"{MFMA} {v(LACC+qt*4,4)}, {v(ONES,4)}, {v(sreg(u, qt, 0),4)}, {'0' if first else v(LACC+qt*4,4)}" for qt in range(4)], frag=False)
    HPOLL = opt('--hpoll', 7)
    qk_groups(0)
    S.tasks.extend(soft_tasks(0))
    for u in range(16):
        if TS and u == opt('--tu2', 0): S.q['x'].extend((None, f"buffer_load_dword v{VCD}, v{TV}, {srd(W2)}, s{TW} offen", "tch", f"s_add_u32 s{TW}, s{TW}, {64 << TS}") for _ in range(-(-7168 // (64 << TS))))
        if TS and u == TU: S.q['x'].extend((None, f"buffer_load_dword v{VCD}, v{TV}, {srd(WO)}, s3 offen", "tch", f"s_add_u32 s3, s3, {64 << TS}") for _ in range(8192 // (64 << TS)))
        if CPF & 4 and u == 6: S.q['x'].append((None, code_touch(VCD), "cpf", None))
        if u == HPOLL: S.q['x'].append((None, poll_load(VFP8, FLG8), ("poll", "h"), None))
        if u + 1 < 16: qk_groups(u + 1)
        S.flush(("s", u))
        if u == HPOLL + 1:
            S.tasks.extend(poll_tasks("h", VFP8, FLG8, T4, 2, lambda: [S.q['x'].extend(act_items(n)) for n in range(6)]))
        if u + 1 < 16: S.tasks.extend(soft_tasks(u + 1))
        pv_groups(u)
    S.flush()
    stamp()
    k.region = "chk"
    k.e(f"s_mov_b32 s{T5}, 0")
    k.e("L_norm:")
    k.e("s_nop 7")
    k.e(f"v_add_f32 v{VT}, v{LACC}, v{LACC+4}\nv_add_f32 v{VT+1}, v{LACC+8}, v{LACC+12}\nv_add_f32 v{VT}, v{VT}, v{VT+1}")
    k.e(f"s_mov_b32 s{T0}, {f32(2.0**30)}\nv_cmp_nge_f32 vcc, s{T0}, v{VT}")
    k.e(f"s_cmp_lg_u32 s{T5}, 0\ns_cbranch_scc1 L_normok\ns_cbranch_vccnz L_slow\nL_normok:")
    k.region = "s2o"
    RCP, BIAS, SEL, VOUT = VKV, WK, WK, VKV
    for b in range(2): k.vmem(f"buffer_load_dwordx2 {v(BIAS+4+2*b,2)}, v{VQ8}, {srd(B2)}, s{COL} offen offset:{32*b}", "b2")
    for qt in range(4): k.e(f"v_rcp_f32 v{RCP+qt}, v{LACC+qt*4}")
    OS, OP, OW, OA = opt('--os', 60), opt('--op', 9), opt('--ow', 110), opt('--oa', 10)
    OM = opt('--omode', 'sc1').replace('_', ' ').replace('plain', '')
    SKIP = opt('--skip', 8)
    holds = []
    ngrp = [0]
    def choose():
        ngrp[0] += 1
        if not (S.q['x'] or S.q['d']): return None
        for h in holds:
            if h[0] <= S.nm < h[1]:
                if h[2] <= 0: return None
                h[2] -= 1
        def dl(it): return it[2][1] if it[2][0] == "act" else ((it[2][1] - 25)*4 - 1 if it[2][0] == "dma" else -99)
        def best(): return min((q for q in 'xd' if S.q[q]), key=lambda q: dl(S.q[q][0]), default=None)
        urgent = dl(S.q[best()][0]) - cur[0] <= URG
        if ngrp[0] % SKIP == SKIP - 1 and not urgent: return None
        if urgent and len(S.q['x']) + len(S.q['d']) > 1 and dl(S.q[best()][0]) - cur[0] <= URG - 1:
            for t in S.carry: k.e(t)
            S.carry = []
            q = S.q[best()]; lead.append((cur[0], q[0][2])); emit_now(k, q[:1]); del q[:1]
        lead.append((cur[0], S.q[best()][0][2]))
        return [best()]
    cur = [-4]; lead = []; URG = opt('--urg', 3)
    mid_barrier(24)
    nm0 = S.nm
    holds += [[nm0 + OS, nm0 + OS + 16*OP, 0], [nm0 + OS + 16*OP, nm0 + OS + 16*OP + OW, OA]]
    for e, m in enumerate(EORD):
        for qt in range(4):
            n = e*4 + qt
            t0 = VT + (n % 2)*8; d = OF + n*4; tk = []
            for b in range(2):
                src = QACC + ((2*m+b)*4+qt)*4
                for r in range(4): tk.append(f"v_accvgpr_read_b32 v{t0+4*b+r}, a{src+r}")
            if e == 0:
                pr = (RCP + qt) & ~1; hi = (RCP + qt) & 1
                for p in range(4): tk.append(f"v_pk_mul_f32 {v(t0+2*p,2)}, {v(t0+2*p,2)}, {v(pr,2)} op_sel:[0,{hi}] op_sel_hi:[1,{hi}]")
            else:
                for r in range(8): tk.append(f"v_mul_f32 v{t0+r}, v{t0+r}, v{RCP+qt}")
            for p in range(4): tk.append(f"v_cvt_pk_bf16_f32 v{d+p}, v{t0+2*p}, v{t0+2*p+1}")
            S.tasks.extend(Task(x, mark=("o", e)) for x in tk)
            S.tasks.append(Task(f"buffer_store_dwordx4 {v(d,4)}, {vl(qt)}, {srd(WS)}, s{OST+m} offen offset:{to(qt)} {OM}", tag="ost",
                                mark="olo" if e < 2 else None, after=nm0 + OS + OP*n))
            if e == 0:
                S.flush(("o", 0))
                emit_now(k, S.q['d'][:1]); del S.q['d'][:1]
    S.tasks.extend([Task(f"v_and_b32 v{VT}, 15, v0"), Task(f"v_lshlrev_b32 v{VT}, 11, v{VT}"), Task(f"v_lshl_add_u32 v{VOUT}, v{VQ8}, 1, v{VT}")])
    S.q['x'].extend(act_items(6) + act_items(7))
    for e, m in enumerate(EORD):
        S.flush(("o", e))
        if e == 3:
            k.wait_vm(["b2"])
            S.tasks[:0] = [Task(x, mark="bias") for b in range(2) for p in range(2) for x in
                           (f"v_lshlrev_b32 v{BIAS+4*b+2*p}, 16, v{BIAS+4+2*b+p}", f"v_and_b32 v{BIAS+4*b+2*p+1}, 0xffff0000, v{BIAS+4+2*b+p}")]
        for ft in range(8):
            def mf(ar, e=e, ft=ft):
                return [f"{MFMA} {v(SACC+(ft*4+tt)*4,4)}, {a(ar,4)}, {v(OF+(e*4+tt)*4,4)}, {'0' if e == 0 else v(SACC+(ft*4+tt)*4,4)}" for tt in range(4)]
            S.group(mf, vq=choose(), nextpre=1 if (e, ft) == (3, 7) else 0)
    stamp()
    k.region = "f2"
    OBAR, OPOLL, FBAR, FPOLL, FSUM = opt('--obar', 28), opt('--opoll', 18), opt('--fbar', 35), opt('--fpoll', 43), opt('--fsum', 47)
    FS, FP, FW, FA = opt('--fs', 40), opt('--fp', 9), opt('--fw', 110), opt('--fa', 10); XLD = opt('--xld', 14); SFLAG = opt('--sflag', 4); XUN = opt('--xun', 22)
    first_of[OBAR]["also"] = ["ost"]
    bar_hooks[OBAR] = [lambda: S.tasks.extend(flag_tasks(3, T4))]
    first_of[FBAR]["also"] = ["pst"]
    bar_hooks[FBAR] = [lambda: S.tasks.extend(flag_tasks(4, T4))]
    gate = {"o": False, "f": False}
    pending = []
    def acc_of(n, ft, tt):
        if n >= 28: return v(SACC + (ft*4+tt)*4, 4)
        return a(QACC + (ft*4+tt)*4, 4) if ft < 6 else v(FOWN + ((ft-6)*4+tt)*4, 4)
    def release(g):
        gate[g] = True
        for it in pending: S.q['x'].extend(it)
        del pending[:]
    PIN = 48
    def xres(b, tt): return XRES + tt*8 + b*4
    def x_unpack():
        tk = [Task(fn=lambda: k.wait_vm(["xres"]))]
        for tt in range(4):
            d = XRES + 16 + 4*tt
            for sw in ("16", "32"): tk += [Task(f"v_permlane{sw}_swap_b32 v{d}, v{d+2}"), Task(f"v_permlane{sw}_swap_b32 v{d+1}, v{d+3}")]
            for p in range(4): tk += [Task(f"v_lshlrev_b32 v{XRES+8*tt+2*p}, 16, v{d+p}"), Task(f"v_and_b32 v{XRES+8*tt+2*p+1}, 0xffff0000, v{d+p}")]
        tk += [Task(x) for x in (f"v_and_b32 v{VT}, 15, v0", f"v_lshrrev_b32 v{VT+1}, 1, v{VQ8}", f"v_sub_u32 v{VT}, v{VT}, v{VT+1}",
               f"v_mov_b32 v{SEL}, 0", f"v_mov_b32 v{SEL+1}, 0", f"v_mov_b32 v{SEL+4}, 0", f"v_mov_b32 v{SEL+5}, 0", f"v_mov_b32 v{VT+1}, 0x3f80", f"v_mov_b32 v{VT+2}, 0x3f800000")]
        for p in range(2):
            tk += [Task(x) for x in (f"v_cmp_eq_u32 vcc, {2*p}, v{VT}", f"v_cndmask_b32 v{SEL+2+p}, 0, v{VT+1}, vcc", f"v_cmp_eq_u32 vcc, {2*p+1}, v{VT}", f"v_cndmask_b32 v{SEL+2+p}, v{SEL+2+p}, v{VT+2}, vcc")]
        S.tasks.extend(tk)
    def f_publish():
        n = 0
        holds.extend([[S.nm + FS, S.nm + FS + 12*FP, 0], [S.nm + FS + 12*FP, S.nm + FS + 12*FP + FW, FA]])
        for m in range(3):
            for tt in range(4):
                t0 = VT + (n % 2)*8; af = S.nm + FS + FP*n; n += 1
                for b in range(2):
                    src = QACC + ((2*m+b)*4+tt)*4
                    for r in range(4): S.tasks.append(Task(f"v_accvgpr_read_b32 v{t0+4*b+r}, a{src+r}", mark="pf"))
                for p in range(4): S.tasks.append(Task(f"v_cvt_pk_bf16_f32 v{t0+p}, v{t0+2*p}, v{t0+2*p+1}"))
                S.tasks.append(Task(f"buffer_store_dwordx4 {v(t0,4)}, v{VL16}, {srd(WS)}, s{PST+m} offen offset:{tt*1024} sc1", tag="pst", after=af))
        for m in range(3): S.tasks.append(Task(f"s_add_u32 s{PST+m}, s{PST+m}, {PS_OFF-PF_OFF}"))
    def f_gather():
        for i in range(3):
            for tt in range(4): S.tasks.append(Task(f"buffer_load_dwordx4 {a(PIN+(i*4+tt)*4,4)}, v{VL16}, {srd(WS)}, s{PLD+i} offen offset:{tt*1024} sc1", tag="fin"))
            S.tasks.append(Task(f"s_add_u32 s{PLD+i}, s{PLD+i}, {PS_OFF-PF_OFF}"))
    def f_finish():
        assert not any(t.tag == "fin" for t in S.tasks) and "fin" in k.vm
        for i in range(3):
            for h in range(2):
                S.group(lambda _, i=i, h=h: [f"{MFMA} {v(FOWN+(b*4+tt)*4,4)}, {v(SEL+2-2*b,4)}, {a(PIN+(i*4+tt)*4,4)}, {v(FOWN+(b*4+tt)*4,4)}" for tt in (2*h, 2*h+1) for b in range(2)],
                        frag=False, pre=(lambda: k.wait_vm(["fin"])) if i == h == 0 else None, vq=choose())
        release("f")
        tk = []
        for c in range(8):
            g = FOWN + 4*c; t = VT + 4*(c % 4)
            for r in range(4): tk.append(Task(f"v_mul_f32 v{t+r}, {f32(-math.log2(math.e))}, v{g+r}"))
            for r in range(4): tk.append(Task(f"v_exp_f32 v{t+r}, v{t+r}"))
            for r in range(4): tk.append(Task(f"v_add_f32 v{t+r}, 1.0, v{t+r}"))
            for r in range(4): tk.append(Task(f"v_rcp_f32 v{t+r}, v{t+r}"))
            for r in range(4): tk.append(Task(f"v_mul_f32 v{g+r}, v{g+r}, v{t+r}"))
        S.tasks.extend(tk)
    def s_publish(m):
        tk = []
        for tt in range(4):
            d = SACC + ((2*m)*4+tt)*4; e_ = SACC + ((2*m+1)*4+tt)*4
            tk += [Task(f"v_cvt_pk_bf16_f32 v{d}, v{d}, v{d+1}"), Task(f"v_cvt_pk_bf16_f32 v{d+1}, v{d+2}, v{d+3}"),
                   Task(f"v_cvt_pk_bf16_f32 v{d+2}, v{e_}, v{e_+1}"), Task(f"v_cvt_pk_bf16_f32 v{d+3}, v{e_+2}, v{e_+3}"),
                   Task(f"buffer_store_dwordx4 {v(d,4)}, v{VL16}, {srd(WS)}, s{PST+m} offen offset:{tt*1024} sc1", tag="pst", mark="ps")]
        i = max([j + 1 for j, t in enumerate(S.tasks) if t.mark == "ps"], default=0)
        S.tasks[i:i] = tk
    seen = set()
    gp = (NACT - TAILK)*8 + (TAILK - 4)*6
    for gi, (n, ft) in enumerate(order):
        new = n not in seen
        if gi % 32 == 0: stamp('p3a')
        if gi >= 224 and gi % 16 == 0: stamp('p3b')
        if gi >= 320 and gi % 16 == 0: stamp('p3c')
        if gi < 224 and gi % 16 == 0: stamp('p3d')
        if (n, ft) == (0, 6): S.flush("bias"); S.flush("olo")
        if new:
            seen.add(n)
            cur[0] = n
            if n % 4 == 0: mid_barrier(25 + n//4)
            if n == XLD:
                for tt in range(4): S.tasks.append(Task(f"buffer_load_dwordx4 {v(XRES+16+4*tt,4)}, v{VOUT}, {srd(XS)}, s{OOF+tt} offen", tag="xres"))
            if n == 28:
                k.region = "s2"; stamp()
                f_publish()
            if CPF & 8 and n == 16: S.q['x'].append((None, code_touch(VCD), "cpf", None))
            if n == XUN: x_unpack()
            if n == OPOLL: S.q['x'].insert(0, (None, poll_load(VFP8, FLG8), ("poll", "o"), None))
            if n == OPOLL + 2: S.tasks.extend(poll_tasks("o", VFP8, FLG8, T4, 3, lambda: release("o")))
            if n == FPOLL: S.q['x'].insert(0, (None, poll_load(VFP4, FLG4), ("poll", "pf"), None))
            if n == FPOLL + 1: S.tasks.extend(poll_tasks("pf", VFP4, FLG4, T4, 4, f_gather))
            if n == FSUM: f_finish()
            if n + AD == NACT - 6: S.flush("pf")
            it = act_items(n + AD) if n + AD > 7 else []
            if (n + AD >= 28 and not gate["o"]) or (n + AD >= NACT - 3 and not gate["f"]): pending.append(it)
            else: S.q['x'].extend(it)
        if gi > gp and (gi - gp) % 8 == 0 and gi <= gp + 24: s_publish((gi - gp)//8 - 1)
        if gi == len(order) - SFLAG:
            S.flush("ps")
            S.tasks[:0] = [Task(fn=lambda: k.wait_vm(["pst"])), Task(fn=lambda: k.e("s_barrier"))] + flag_tasks(5, T4) + [Task(poll_load(VFP4, FLG4), tag=("poll", "ps"))]
        def mf(ar, n=n, ft=ft):
            c = lambda tt: acc_of(n, ft, tt) if n else ('0' if ft < 6 else v(BIAS + 4*(ft-6), 4))
            return [f"{MFMA} {acc_of(n, ft, tt)}, {a(ar,4)}, {actreg(n, tt)}, {c(tt)}" for tt in range(4)]
        def pre(n=n):
            assert not any(it[2] == ("act", n) for it in S.q['x']), n
            k.wait_vm([("act", n)])
        nxt = gi + 1 < len(order) and order[gi+1][0] not in seen and order[gi+1][0] != n
        S.group(mf, pre=pre if new else None, nextpre=1 if nxt else 0, vq=choose())
    S.flush(); S.flush_side()
    if '--lead' in sys.argv: print(sorted(dict((str(t), c) for c, t in lead).items(), key=lambda x: x[1]))
    stamp(); stamp('p3c')
    k.region = "final"
    SOWN = SACC + 96
    k.wait_vm([("poll", "ps")])
    for t in poll_check("ps", VFP4, FLG4, T4, 5): k.e(t)
    stamp()
    for i in range(3):
        for tt in range(4): k.vmem(f"buffer_load_dwordx4 {a((i*4+tt)*4,4)}, v{VL16}, {srd(WS)}, s{PLD+i} offen offset:{tt*1024} sc1", ("sin", i))
    for i in range(3):
        k.wait_vm([("sin", i)])
        for tt in range(4):
            for b in range(2):
                d = v(SOWN + (b*4+tt)*4, 4)
                k.e(f"{MFMA} {d}, {v(SEL + 2 - 2*b, 4)}, {a((i*4+tt)*4,4)}, {d}")
    stamp()
    for tt in range(4):
        d = 64 + tt*4
        for b in range(2):
            for p in range(2):
                o = (b*4+tt)*4 + 2*p
                k.e(f"v_pk_fma_f32 {v(SOWN+o,2)}, {v(SOWN+o,2)}, {v(FOWN+o,2)}, {v(xres(b, tt)+2*p,2)}")
        for b in range(2):
            for p in range(2):
                o = SOWN + (b*4+tt)*4 + 2*p
                k.e(f"v_cvt_pk_bf16_f32 v{d+2*b+p}, v{o}, v{o+1}")
        k.e(f"v_permlane32_swap_b32 v{d}, v{d+2}\nv_permlane32_swap_b32 v{d+1}, v{d+3}")
        k.e(f"v_permlane16_swap_b32 v{d}, v{d+2}\nv_permlane16_swap_b32 v{d+1}, v{d+3}")
        k.e(f"buffer_store_dwordx4 {v(d,4)}, v{VOUT}, {srd(OUT)}, s{OOF+tt} offen")
    if STAMPS:
        k.e("s_waitcnt vmcnt(0)"); stamp()
        k.e(f"s_cmp_lg_u32 s{WAVE}, 0\ns_cbranch_scc1 L_end\ns_waitcnt lgkmcnt(0)")
        k.e(f"s_lshl_b32 s{T0}, s2, 6\ns_add_u32 s{T0}, s{T0}, {STAMP_OFF}\nv_mov_b32 v2, 0\ns_mov_b64 exec, 1")
        for n in range(nstamp[0]):
            k.e(f"v_mov_b32 v{4+n}, s{STB+2*n}\nbuffer_store_dword v{4+n}, v2, {srd(WS)}, s{T0} offen offset:{4*n}")
        if '--dbgstamp' in sys.argv:
            sel = [int(x) for x in opt('--dbgstamp', '').split(',')]
            k.e(f"s_load_dwordx2 s[{KC}:{KC+1}], s[0:1], 88\ns_waitcnt lgkmcnt(0)"); mk_srd(KC, 256)
            k.e(f"s_cmp_eq_u32 s2, 0\ns_cselect_b32 s{T0}, 0, 256\ns_cmp_eq_u32 s2, 37\ns_cselect_b32 s{T0}, 32, s{T0}")
            for i, n in enumerate(sel):
                k.e(f"s_sub_u32 s{T1}, s{STB+2*n}, s{STB}\nv_mov_b32 v{20+i}, s{T1}\nbuffer_store_dword v{20+i}, v2, {srd(KC)}, s{T0} offen offset:{4+4*i}")
    k.e("L_end:\ns_endpgm")
    k.region = "slow"
    FR = 160
    k.e(f"L_slow:\ns_mov_b32 s{T5}, 1")
    k.e(f"s_lshl_b32 s{T0}, s{R}, 19\ns_add_u32 s{T0}, s{T0}, {1536*256}")
    k.e(f"v_and_b32 v40, 15, v0\nv_lshlrev_b32 v41, 8, v40\nv_lshl_add_u32 v41, v{VQ8}, 1, v41")
    k.e(f"v_lshlrev_b32 v42, 7, v{VQ8}\nv_lshl_add_u32 v42, v40, 1, v42")
    def loadk():
        k.e(f"s_lshl_b32 s{T2}, s{T1}, 13\ns_add_u32 s{T2}, s{T2}, s{T0}\ns_add_u32 s{T3}, s{T2}, 4096")
        for n in range(8): k.e(f"buffer_load_dwordx4 {v(FR+n*4,4)}, v41, {srd(KC)}, s{T2 + n//4} offen offset:{(n%4)*64}")
        k.e("s_waitcnt vmcnt(0)")
    def qk(cneg):
        for kt in range(2):
            for ks in range(4):
                for qt in range(4):
                    d = v(sreg(0, qt, kt), 4)
                    c = d if ks > 0 else (v(NEGM+qt*4, 4) if cneg else "0")
                    k.e(f"{MFMA} {d}, {v(FR+(kt*4+ks)*4,4)}, {v(QF+(qt*4+ks)*4,4)}, {c}")
    for qt in range(4): k.e(f"v_mov_b32 v{NEGM+qt*4}, 0xff800000")
    k.e(f"s_mov_b32 s{T1}, 0\nL_slow1:")
    loadk(); qk(False)
    for qt in range(4):
        b = sreg(0, qt, 0); m = NEGM + qt*4
        for p in range(4): k.e(f"v_max3_f32 v{m}, v{m}, v{b+2*p}, v{b+2*p+1}")
    k.e(f"s_add_u32 s{T1}, s{T1}, 1\ns_cmp_lt_u32 s{T1}, 16\ns_cbranch_scc1 L_slow1")
    for qt in range(4):
        reduce4(NEGM+qt*4, NEGM+qt*4+1, "v_max_f32")
        for r in range(3, -1, -1): k.e(f"v_sub_f32 v{NEGM+qt*4+r}, 0, v{NEGM+qt*4}")
    for i in range(128): k.e(f"v_accvgpr_write_b32 a{QACC+i}, 0")
    for i in range(16): k.e(f"v_mov_b32 v{LACC+i}, 0")
    k.e(f"s_mov_b32 s{T1}, 0\nL_slow2:")
    loadk(); qk(True)
    for qt in range(4):
        b = sreg(0, qt, 0)
        for r in range(8): k.e(f"v_exp_f32 v{b+r}, v{b+r}")
        for p in range(4): k.e(f"v_cvt_pk_bf16_f32 v{b+p}, v{b+2*p}, v{b+2*p+1}")
    for dt in range(8):
        k.e(f"s_lshl_b32 s3, s{R}, 1\ns_add_u32 s3, s3, {dt+2}\ns_and_b32 s3, s3, 7\ns_lshl_b32 s3, s3, 5\nv_add_u32 v43, s3, v42")
        for e_ in range(8):
            k.e(f"buffer_load_ushort v{44+e_}, v43, {srd(VC)}, s{T2 + e_//4} offen offset:{(e_%4)*256}")
        k.e("s_waitcnt vmcnt(0)")
        for p in range(4): k.e(f"v_lshl_or_b32 v{FR+dt*4+p}, v{45+2*p}, 16, v{44+2*p}")
    for dt in range(8):
        for qt in range(4):
            d = a(QACC + (dt*4+qt)*4, 4)
            k.e(f"{MFMA} {d}, {v(FR+dt*4,4)}, {v(sreg(0, qt, 0),4)}, {d}")
    for qt in range(4): k.e(f"{MFMA} {v(LACC+qt*4,4)}, {v(ONES,4)}, {v(sreg(0, qt, 0),4)}, {v(LACC+qt*4,4)}")
    k.e("s_nop 7")
    k.e(f"s_add_u32 s{T1}, s{T1}, 1\ns_cmp_lt_u32 s{T1}, 16\ns_cbranch_scc1 L_slow2")
    k.e("s_branch L_norm")
    emit_spins()
    k.e("L_code_end:")
    print("over:", S.over, "nops:", k.nopstat)

def main():
    out = sys.argv[1] if len(sys.argv) > 1 and sys.argv[1].endswith(".s") else f"cdna_kernels/{NAME}.s"
    start(); main_body()
    for p in check_hazards(k.L): print("HAZARD", p)
    txt = "; generated by dev/gen4.py\n"
    txt += f"; @launch grid=(256,1,1) block=(256,1,1) lds={LDS_SCR+256}\n"
    txt += '.amdgcn_target "amdgcn-amd-amdhsa--gfx950"\n.text\n' + k.text()
    txt += f""".section .rodata,"a"
.p2align 6
.amdhsa_kernel {NAME}_kernel
  .amdhsa_next_free_vgpr 512
  .amdhsa_next_free_sgpr 102
  .amdhsa_accum_offset 256
  .amdhsa_group_segment_fixed_size 0
  .amdhsa_kernarg_size 104
  .amdhsa_user_sgpr_count 2
  .amdhsa_user_sgpr_kernarg_segment_ptr 1
  .amdhsa_system_sgpr_workgroup_id_x 1
.end_amdhsa_kernel
"""
    open(out, "w").write(txt)
    print("wrote", out, len(txt), "bytes", len(k.L), "lines")
main()
```

```python
import sys, struct, math
from asm2 import K, Task, Sched, emit_now, v, a, s, check_hazards

NAME = "recurrent_scan__sliding_block_cached__dense_activation_gelu__prompt"
MB = 1 << 20
XN_OFF, FL_OFF, O_OFF, H_OFF, PF_OFF, PS_OFF, STAMP_OFF = 0, 4*MB, 8*MB, 24*MB, 40*MB, 56*MB, 80*MB
WS_BYTES = 256*MB
def opt(name, default):
    return type(default)(sys.argv[sys.argv.index(name)+1]) if name in sys.argv else default
STAMPS = '--stamps' in sys.argv
XD = opt('--xd', 4)
AD = opt('--ad', 7)
TOUCH = '--touch' in sys.argv
TS = opt('--ts', 5)
TU = opt('--tu', 0)
NT = '' if '--nont' in sys.argv else ' nt'
SPIN_LIMIT = 1 << 18
def f32(x): return "0x%08x" % struct.unpack("<I", struct.pack("<f", x))[0]
MFMA = "v_mfma_f32_16x16x32_bf16"
LDS_SCR = 131072

WQ, W1, WS, B1, KC, VC, WO, W2, XS, OUT, DBG, B2 = 4, 8, 12, 16, 20, 24, 28, 32, 36, 40, 44, 48
WAVE, RB, J, R, FB, TOK64, M0W, M0KV, M0P, SKV, SW3, SX, NONCE, FLOWN, SWQ, SW1, ST1, ST2 = range(52, 70)
T0, T1, T2, T3, T4, T5 = range(70, 76)
CB = 76
TW = 78
STB = 80
WL = opt('--wl', 0)
W0 = opt('--w0', 2)
CPF = opt('--cpf', 7)
def srd(n): return f"s[{n}:{n+3}]"
VP3 = 1
VKV = 9
VL16, VFP8, VFP4 = 13, 14, 15
VLA, VLB = 58, 59
WV, WK = 16, 32
VT = 40
VCD, VCODE = 56, 57
VFST, VFVAL, VPOLL, VQ8 = 60, 61, 62, 63
G1D, G1Q, G1F, VTCH, VDUM, VTW, VTS = 64, 72, 80, 96, 97, 98, 99
QF, FACC, SB, NEGM, ONES, LACC = 64, 128, 128, 192, 208, 212
SACC = 64
OF = 192
FOWN, XRES = 192, 224
TAILK = opt('--tailk', 14)
def vl(tt): return f"v{VLA if tt < 2 else VLB}"
def to(tt): return (tt & 1)*1024
QACC, AR, XR = 0, 128, 160

k = K()
nstamp = [0]
SSET = opt('--sset', 'main')
def stamp(which='main'):
    if STAMPS and (which == SSET or which == 'all') and nstamp[0] < 11:
        n = nstamp[0]; nstamp[0] += 1
        k.e(f"{'s_memtime' if '--cyc' in sys.argv else 's_memrealtime'} s[{STB+2*n}:{STB+2*n+1}]")
spins = []
def poll_load(voff, soff): return f"buffer_load_dword v{VPOLL}, v{voff}, {srd(WS)}, s{soff} offen sc1"
def poll_check(name, voff, soff, sref, phase):
    spins.append((name, voff, soff, sref, phase))
    return [f"v_subrev_u32 v{VPOLL}, s{sref}, v{VPOLL}", f"v_cmp_le_u32 vcc, {16-phase}, v{VPOLL}", f"s_cbranch_vccnz SPIN_{name}\nBACK_{name}:"]
def emit_spins():
    for name, voff, soff, sref, phase in spins:
        k.e(f"SPIN_{name}:\ns_mov_b32 s3, {SPIN_LIMIT}\nSPINL_{name}:")
        k.e(poll_load(voff, soff)); k.e("s_waitcnt vmcnt(0)")
        k.e(f"v_subrev_u32 v{VPOLL}, s{sref}, v{VPOLL}\nv_cmp_le_u32 vcc, {16-phase}, v{VPOLL}\ns_cbranch_vccz BACK_{name}")
        k.e(f"s_sub_u32 s3, s3, 1\ns_cmp_lg_u32 s3, 0\ns_cbranch_scc1 SPINL_{name}\ns_branch BACK_{name}")
FLAG_STORE = f"buffer_store_dword v{VFVAL}, v{VFST}, {srd(WS)}, s{FLOWN} offen sc1"

def code_touch(d): return f"global_load_dword v{d}, v{VCODE}, s[{CB}:{CB+1}]"
def w_touch(): return (None, f"global_load_dword v{VDUM}, v{VTW}, s[{TW}:{TW+1}]", "pf", f"v_add_u32 v{VTW}, v{VTS}, v{VTW}")
def reduce4(x, t, op):
    k.e(f"v_mov_b32 v{t}, v{x}\nv_permlane32_swap_b32 v{x}, v{t}\n{op} v{x}, v{x}, v{t}")
    k.e(f"v_mov_b32 v{t}, v{x}\nv_permlane16_swap_b32 v{x}, v{t}\n{op} v{x}, v{x}, v{t}")
def round_bf16(d, x):
    k.e(f"v_cvt_pk_bf16_f32 v{d}, v{x}, v{x}\nv_and_b32 v{d}, 0xffff0000, v{d}")
def mk_srd(d, nbytes):
    k.e(f"s_and_b32 s{d+1}, s{d+1}, 0xffff\ns_mov_b32 s{d+2}, {nbytes}\ns_mov_b32 s{d+3}, 0x20000")

def next_head(reg, h, sh, base):
    return [f"s_cmp_eq_u32 s{FB}, {h}\ns_cselect_b32 s{reg}, 7, {h}", f"s_lshl_b32 s{reg}, s{reg}, {sh}", f"s_add_u32 s{reg}, s{reg}, s{base}"]
def dma_items(st):
    it = []; slot = (st % 4)*32768
    if st < 16:
        for m in range(2):
            for i in range(4):
                it.append((f"s_add_u32 m0, s{M0W}, {slot + m*16384}" if i == 0 else None,
                           f"buffer_load_dwordx4 v{G1D+4*m+i}, {srd(W1 if m else WQ)}, s{SWQ+m} offen offset:{i*1024}{NT if st < opt('--ntst', 16) else ''} lds", ("dma", st),
                           f"s_add_u32 s{SWQ+m}, s{SWQ+m}, {64*(7168 if m else 8192)}" if i == 3 else None))
    elif st < 24:
        for bl in range(4):
            b = (st - 16)*4 + bl
            isk = b == 0 or (b % 2 == 1 and b < 31)
            for i in range(2):
                post = None
                if i == 1 and (isk or b == 30): post = f"s_add_u32 s{SKV}, s{SKV}, 8192"
                it.append((f"s_add_u32 m0, s{M0KV}, {slot + bl*8192}" if i == 0 else None,
                           f"buffer_load_dwordx4 v{VKV + (0 if isk else 2) + i}, {srd(KC if isk else VC)}, s{SKV} offen offset:{i*1024} lds", ("dma", st), post))
    elif st < 39:
        for i in range(8):
            post = None
            if i == 7:
                if st == 24: post = [f"s_mul_i32 s{SW3}, s{R}, {896*2048}"]
                elif st < 31: post = [f"s_add_u32 s{SW3}, s{SW3}, {128*2048}"]
                else:
                    post = next_head(SW3, st - 31, 18, SWB) if st < 38 else None
            it.append((f"s_add_u32 m0, s{M0O if st == 24 else M0P}, {slot + (i//4)*4096}" if i % 4 == 0 else None,
                       f"buffer_load_dwordx4 v{VP3+i}, {srd(W2 if 25 <= st < 32 else WO)}, s{SW3} offen offset:{(i%4)*1024}{' nt' if '--p3nt' in sys.argv else ''} lds", ("dma", st), post))
    return it
def xreg(kap, tt): return a(XR + (kap % 6)*16 + tt*4, 4)
def x_items(kap):
    if kap >= 32: return []
    return [(None, f"buffer_load_dwordx4 {xreg(kap, tt)}, {vl(tt)}, {srd(WS)}, s{SX} offen offset:{to(tt)} sc1", ("x", kap),
             f"s_add_u32 s{SX}, s{SX}, 4096" if tt == 3 else None) for tt in range(4)]
SXO, SOB, SWB, M0O = 4, 5, 69, 19
NACT = 56
RING = [XR + 16*i for i in range(6)] + [96, 112]
def actreg(n, tt):
    return a((RING[n % 8] if n < NACT - 6 else (n - (NACT - 6))*16) + tt*4, 4)
def act_items(n):
    if n >= NACT: return []
    post = [f"s_add_u32 s{SX}, s{SX}, 4096"]
    if n >= 27 and n % 4 == 3: post = next_head(SX, (n - 27)//4, 14, SXO)
    return [(None, f"buffer_load_dwordx4 {actreg(n, tt)}, {vl(tt)}, {srd(WS)}, s{SX} offen offset:{to(tt)} sc1", ("act", n), post if tt == 3 else None) for tt in range(4)]

def facc(ft, tt): return FACC + (ft*16 if ft < 7 else 104) + tt*4
def start():
    k.region = "start"
    k.e(f".globl {NAME}_kernel\n.p2align 8\n.type {NAME}_kernel,@function\n{NAME}_kernel:")
    k.e("s_cmp_lt_u32 s2, 256\ns_cbranch_scc1 L_go\ns_endpgm\nL_go:")
    stamp()
    k.e(f"s_getpc_b64 s[{CB}:{CB+1}]\nL_pc:")
    for d, off in ((XS, 0), (WQ, 24), (W1, 48), (WS, 96), (DBG, 88)):
        k.e(f"s_load_dwordx2 s[{d}:{d+1}], s[0:1], {off}")
    k.e(f"v_lshrrev_b32 v1, 6, v0\nv_and_b32 v0, 63, v0\nv_readfirstlane_b32 s{WAVE}, v1")
    k.e(f"s_and_b32 s{T0}, s2, 7\ns_lshr_b32 s{T1}, s2, 3")
    k.e(f"s_and_b32 s{RB}, s{T0}, 1\ns_lshl_b32 s{RB}, s{RB}, 2\ns_and_b32 s{T2}, s{T1}, 3\ns_add_u32 s{RB}, s{RB}, s{T2}")
    k.e(f"s_lshr_b32 s{R}, s{T0}, 1\ns_lshr_b32 s{FB}, s{T1}, 2\ns_lshl_b32 s{J}, s{R}, 3\ns_add_u32 s{J}, s{J}, s{FB}")
    k.e(f"s_lshl_b32 s{TOK64}, s{RB}, 2\ns_add_u32 s{TOK64}, s{TOK64}, s{WAVE}")
    k.e(f"s_lshl_b32 s{M0W}, s{WAVE}, 12\ns_lshl_b32 s{M0KV}, s{WAVE}, 11\ns_lshl_b32 s{M0P}, s{WAVE}, 13")
    k.e(f"v_and_b32 v40, 7, v0\nv_lshrrev_b32 v41, 3, v0\nv_lshlrev_b32 v42, 11, v40\nv_lshl_add_u32 v42, v41, 4, v42")
    k.e(f"s_lshl_b32 s{T0}, s{RB}, 19\ns_lshl_b32 s{T1}, s{J}, 14\ns_add_u32 s{T0}, s{T0}, s{T1}\ns_lshl_b32 s{T1}, s{WAVE}, 9\ns_add_u32 s{T0}, s{T0}, s{T1}")
    k.e("s_waitcnt lgkmcnt(0)")
    mk_srd(XS, 4*MB)
    RAW, X = 128, 144
    for i in range(4): k.vmem(f"buffer_load_dwordx4 {v(RAW+4*i,4)}, v42, {srd(XS)}, s{T0} offen offset:{128*i}", ("ln", i))
    k.e(f"s_lshr_b32 s{T1}, s2, 1\ns_and_b32 s{T1}, s{T1}, 12\ns_add_u32 s{T1}, s{T1}, s{WAVE}\ns_lshl_b32 s{T1}, s{T1}, 13")
    k.e(f"v_lshlrev_b32 v{VCODE}, 7, v0\nv_add_u32 v{VCODE}, s{T1}, v{VCODE}\nv_min_u32 v{VCODE}, L_code_end-L_pc-4, v{VCODE}")
    if CPF & 1: k.vmem(code_touch(VDUM), "cpf")
    for d, off in ((B1, 56), (KC, 8), (VC, 16), (WO, 32), (W2, 64), (OUT, 80), (B2, 72)):
        k.e(f"s_load_dwordx2 s[{d}:{d+1}], s[0:1], {off}")
    k.e(f"s_lshl_b32 s{T1}, s2, 2\ns_add_u32 s{T1}, s{T1}, s{WAVE}\ns_cmp_lt_u32 s{T1}, 512\ns_cselect_b64 s[{TW}:{TW+1}], s[{WQ}:{WQ+1}], s[{W1}:{W1+1}]")
    k.e(f"s_cselect_b32 s{T2}, 8, 7\ns_lshl_b32 s{T3}, s{T2}, 6\ns_sub_u32 s{T3}, s{T3}, 1\ns_lshl_b32 s{T2}, s{T2}, 16\ns_and_b32 s{T1}, s{T1}, 511\ns_min_u32 s{T1}, s{T1}, s{T3}\ns_lshl_b32 s{T1}, s{T1}, 10")
    k.e(f"s_mul_i32 s{T3}, s{T2}, {W0}\ns_add_u32 s{T1}, s{T1}, s{T3}\nv_mov_b32 v{VTS}, s{T2}\nv_lshlrev_b32 v{VTW}, 4, v0\nv_add_u32 v{VTW}, s{T1}, v{VTW}")
    mk_srd(WQ, 1024*8192); mk_srd(W1, 1024*7168); mk_srd(WS, WS_BYTES); mk_srd(DBG, 256)
    k.e(f"v_lshrrev_b32 v44, 4, v0\nv_and_b32 v45, 15, v0")
    k.e(f"s_lshl_b32 s{T1}, s{WAVE}, 4\nv_add_u32 v46, s{T1}, v44")
    k.e(f"s_lshl_b32 s{T2}, s{J}, 8\ns_and_b32 s{T5}, s{J}, 1\ns_mul_i32 s{T3}, s{J}, 224\ns_lshl_b32 s{T4}, s{T5}, 5\ns_sub_u32 s{T3}, s{T3}, s{T4}\ns_movk_i32 s{T4}, 7168")
    if '--e1' in sys.argv: k.e(f"s_and_b32 s{T3}, s{T3}, 0xffffff80")
    k.e(f"v_mul_lo_u32 v51, v46, s{T4}")
    for h in range(2):
        k.e(f"v_or_b32 v47, {4*h}, v44\nv_lshlrev_b32 v47, 1, v47\nv_xor_b32 v47, v45, v47\nv_lshlrev_b32 v47, 4, v47")
        k.e(f"v_lshl_add_u32 v48, v46, 13, v47\nv_add_u32 v48, s{T2}, v48\nv_add3_u32 v50, v47, v51, s{T3}")
        for i in (2*h, 2*h+1): k.e(f"v_add_u32 v{G1D+i}, {i*(4*8192-1024)}, v48\nv_add_u32 v{G1D+4+i}, {i*(4*7168-1024)}, v50")
    k.e(f"s_mov_b32 s{SWQ}, 0\ns_mov_b32 s{SW1}, 0")
    k.e(f"s_lshl_b32 s{FLOWN}, s{RB}, 12\ns_add_u32 s{FLOWN}, s{FLOWN}, {FL_OFF}")
    k.e(f"s_or_b32 s{T1}, s{J}, s{WAVE}\ns_cmp_lg_u32 s{T1}, 0\ns_cbranch_scc1 L_nolead")
    k.e(f"v_and_b32 v52, 31, v0\nv_lshlrev_b32 v52, 7, v52")
    k.e(f"buffer_load_dword v53, v52, {srd(WS)}, s{FLOWN} offen sc1\ns_waitcnt vmcnt(0)")
    k.e(f"v_readfirstlane_b32 s{T1}, v53")
    k.e(f"L_lead:\ns_add_u32 s{T1}, s{T1}, 16\ns_cmp_eq_u32 s{T1}, 0\ns_cbranch_scc1 L_lead")
    k.e(f"v_subrev_u32 v54, s{T1}, v53\nv_cmp_gt_u32 vcc, 16, v54\ns_cbranch_vccnz L_lead")
    k.e(f"v_mov_b32 v54, s{T1}\nv_mov_b32 v55, 0\ns_lshl_b32 s{T1}, s{RB}, 5")
    k.e(f"buffer_store_dword v54, v55, {srd(DBG)}, s{T1} offen sc1")
    k.e("L_nolead:")
    emit_now(k, dma_items(0))
    if WL: emit_now(k, [w_touch() for _ in range(W0, 2 + WL)])
    k.e("s_waitcnt lgkmcnt(0)")
    mk_srd(B1, 7168); mk_srd(KC, 2*MB); mk_srd(VC, 2*MB); mk_srd(WO, 4096*2048); mk_srd(W2, 3584*2048); mk_srd(OUT, 4*MB); mk_srd(B2, 2048)
    k.e(f"v_lshlrev_b32 v{VL16}, 4, v0\nv_lshlrev_b32 v{VFP8}, 7, v40\nv_and_b32 v{VFP4}, 3, v0\nv_lshlrev_b32 v{VFP4}, 10, v{VFP4}")
    k.e(f"s_lshl_b32 s{T1}, s{WAVE}, 2\ns_add_u32 s{T1}, s{T1}, {LDS_SCR}\nv_lshlrev_b32 v43, 4, v40\nv_add_u32 v52, s{T1}, v43\nv_add_u32 v43, {LDS_SCR}, v43")
    for i in range(4):
        k.wait_vm([("ln", i)])
        for d in range(4):
            r = RAW + 4*i + d; o = X + 8*i + 2*d
            k.e(f"v_lshlrev_b32 v{o}, 16, v{r}\nv_and_b32 v{o+1}, 0xffff0000, v{r}")
    A_, B_, MEAN = 56, 51, 53
    k.e(f"v_add_f32 v{A_}, v{X}, v{X+1}\nv_add_f32 v{B_}, v{X+2}, v{X+3}")
    for i in range(4, 32, 2): k.e(f"v_add_f32 v{A_}, v{A_}, v{X+i}\nv_add_f32 v{B_}, v{B_}, v{X+i+1}")
    def allsum(off):
        k.e(f"v_add_f32 v{A_}, v{A_}, v{B_}")
        k.e(f"v_add_f32_dpp v{A_}, v{A_}, v{A_} row_ror:8 row_mask:0xf bank_mask:0xf")
        reduce4(A_, B_, "v_add_f32")
        k.e(f"ds_write_b32 v52, v{A_} offset:{off}\ns_waitcnt lgkmcnt(0)\ns_barrier")
        k.e(f"ds_read_b128 v[44:47], v43 offset:{off}\ns_waitcnt lgkmcnt(0)")
        k.e(f"v_add_f32 v44, v44, v45\nv_add_f32 v46, v46, v47\nv_add_f32 v{A_}, v44, v46\nv_mul_f32 v{A_}, {f32(1/1024)}, v{A_}")
    allsum(0)
    k.e(f"v_mov_b32 v{MEAN}, v{A_}\nv_mov_b32 v{A_}, 0\nv_mov_b32 v{B_}, 0")
    for i in range(0, 32, 2):
        k.e(f"v_sub_f32 v48, v{X+i}, v{MEAN}\nv_sub_f32 v49, v{X+i+1}, v{MEAN}\nv_fmac_f32 v{A_}, v48, v48\nv_fmac_f32 v{B_}, v49, v49")
    allsum(128)
    round_bf16(MEAN, MEAN); round_bf16(A_, A_)
    k.e(f"v_add_f32 v{A_}, {f32(1e-5)}, v{A_}"); round_bf16(A_, A_)
    k.e(f"v_sqrt_f32 v{A_}, v{A_}"); round_bf16(A_, A_)
    k.e(f"v_rcp_f32 v{A_}, v{A_}")
    k.e(f"s_lshl_b32 s{T0}, s{RB}, 2\ns_add_u32 s{T0}, s{T0}, s{R}\ns_lshl_b32 s{T0}, s{T0}, 17\ns_lshl_b32 s{T1}, s{WAVE}, 15\ns_add_u32 s{T0}, s{T0}, s{T1}")
    k.e(f"s_bfe_u32 s{T1}, s{J}, 0x20001\ns_lshl_b32 s{T1}, s{T1}, 10\ns_add_u32 s{T0}, s{T0}, s{T1}\ns_lshl_b32 s{T1}, s{T5}, 7\ns_add_u32 s{T0}, s{T0}, s{T1}")
    k.e("v_lshrrev_b32 v50, 2, v41\nv_and_b32 v51, 3, v41\nv_lshlrev_b32 v50, 12, v50\nv_lshl_add_u32 v50, v51, 8, v50\nv_lshl_add_u32 v50, v40, 4, v50")
    for i in range(4):
        for d in range(4):
            o = X + 8*i + 2*d; r = RAW + 4*i + d
            k.e(f"v_sub_f32 v48, v{o}, v{MEAN}\nv_sub_f32 v49, v{o+1}, v{MEAN}\nv_cvt_pk_bf16_f32 v48, v48, v49")
            k.e(f"v_and_b32 v49, 0xffff0000, v48\nv_lshlrev_b32 v48, 16, v48\nv_mul_f32 v48, v48, v{A_}\nv_mul_f32 v49, v49, v{A_}")
            k.e(f"v_cvt_pk_bf16_f32 v{r}, v48, v49")
        k.vmem(f"buffer_store_dwordx4 {v(RAW+4*i,4)}, v50, {srd(WS)}, s{T0} offen sc1", "lnst")
        if i < 3: k.e(f"s_add_u32 s{T0}, s{T0}, 8192")
    stamp('st')
    k.e(f"v_mov_b32 v55, 0\ns_lshl_b32 s{T4}, s{RB}, 5")
    NLOAD = f"buffer_load_dword v54, v55, {srd(DBG)}, s{T4} offen sc1"
    k.vmem(NLOAD, "nonce")
    BI = 112
    k.e(f"v_lshrrev_b32 v44, 4, v0\nv_lshlrev_b32 v{VQ8}, 3, v44\nv_add_u32 v46, s{T3}, v{VQ8}")
    k.e(f"s_lshl_b32 s{T0}, s{T5}, 6\ns_xor_b32 s{T1}, s{T5}, 1\ns_mul_i32 s{T1}, s{T1}, 192")
    for i in range(6): k.vmem(f"buffer_load_dwordx2 {v(BI+2*i,2)}, v46, {srd(B1)}, s{T0} offen offset:{32*i}", "bias")
    for i in range(2): k.vmem(f"buffer_load_dwordx2 {v(BI+12+2*i,2)}, v46, {srd(B1)}, s{T1} offen offset:{32*i}", "bias")
    emit_now(k, dma_items(1))
    k.e("v_bfe_u32 v45, v0, 2, 2\nv_lshl_add_u32 v46, v44, 3, v45\nv_lshlrev_b32 v46, 8, v46\nv_and_b32 v47, 3, v0")
    k.e("v_and_b32 v48, 1, v44\nv_lshl_or_b32 v48, v48, 2, v45")
    k.e("v_lshl_add_u32 v49, v47, 3, v46\nv_lshlrev_b32 v51, 1, v48\nv_xor_b32 v51, v51, v47")
    k.e(f"s_lshl_b32 s{T0}, s{T5}, 1")
    for t in range(8):
        k.e(f"s_add_u32 s{T1}, s{T0}, {t}\ns_and_b32 s{T1}, s{T1}, 7")
        k.e(f"v_xor_b32 v50, s{T1}, v48\nv_lshl_add_u32 v{G1F+t}, v50, 5, v49\nv_add_u32 v{G1F+8+t}, 0x10000, v{G1F+t}")
    k.e(f"s_lshl_b32 s{T0}, s{T5}, 11\nv_add_u32 v{VLA}, s{T0}, v{VL16}\nv_xor_b32 v{VLB}, 2048, v{VLA}")
    for t in range(4): k.e(f"v_xor_b32 v50, {4*t}, v51\nv_lshl_add_u32 v{G1Q+t}, v50, 4, v46\nv_add_u32 v{G1Q+4+t}, 0x10000, v{G1Q+t}")
    k.e("v_and_b32 v45, 15, v0\nv_lshlrev_b32 v46, 8, v45\nv_lshlrev_b32 v48, 1, v40\nv_xor_b32 v48, v48, v44")
    for t in range(4): k.e(f"v_xor_b32 v50, {4*t}, v48\nv_lshl_add_u32 v{WK+t}, v50, 4, v46\nv_add_u32 v{WK+4+t}, 0x10000, v{WK+t}")
    k.e("v_lshrrev_b32 v48, 2, v0\nv_lshlrev_b32 v46, 8, v48\nv_lshl_add_u32 v46, v47, 3, v46\nv_and_b32 v48, 7, v48")
    k.e(f"s_lshl_b32 s{T0}, s{R}, 1\ns_add_u32 s{T0}, s{T0}, 2")
    for t in range(8):
        k.e(f"s_add_u32 s{T1}, s{T0}, {t}\ns_and_b32 s{T1}, s{T1}, 7")
        k.e(f"v_xor_b32 v50, s{T1}, v48\nv_lshl_add_u32 v{WV+t}, v50, 5, v46\nv_add_u32 v{WV+8+t}, 0x10000, v{WV+t}")
    k.e(f"s_lshl_b32 s{T0}, s{R}, 19\ns_add_u32 s{T0}, s{T0}, s{M0KV}\ns_add_u32 s{T0}, s{T0}, {1536*256}")
    k.e(f"s_lshl_b32 s{T1}, s{WAVE}, 16\ns_lshl_b32 s{T2}, s{FB}, 8\ns_add_u32 s{T1}, s{T1}, s{T2}")
    for h in range(2):
        k.e(f"v_or_b32 v47, {4*h}, v44\nv_lshlrev_b32 v47, 1, v47\nv_xor_b32 v47, v45, v47\nv_lshlrev_b32 v47, 4, v47")
        k.e(f"v_lshl_add_u32 v48, v44, 8, v47\nv_add_u32 v{VKV+h}, s{T0}, v48\nv_subrev_u32 v{VKV+2+h}, 16384, v{VKV+h}")
        k.e(f"v_lshl_add_u32 v48, v44, 11, v47\nv_add_u32 v48, s{T1}, v48")
        for i in range(h, 8, 2): k.e(f"v_add_u32 v{VP3+i}, {i*8192 - (i%4)*1024}, v48")
    k.e(f"s_mov_b32 s{SKV}, 0\ns_lshl_b32 s{SW3}, s{J}, 18")
    k.e(f"s_lshl_b32 s{SX}, s{TOK64}, 17")
    k.e(f"s_lshl_b32 s{ST1}, s2, 2\ns_add_u32 s{ST1}, s{ST1}, s{WAVE}\ns_mul_i32 s{ST2}, s{ST1}, 7168\ns_lshl_b32 s{ST1}, s{ST1}, 13\nv_lshlrev_b32 v{VTCH}, 3, v0")
    k.e(f"v_or_b32 v47, s{WAVE}, v0\nv_cmp_eq_u32 vcc, 0, v47\nv_bfrev_b32 v48, 1\nv_cndmask_b32 v{VFST}, v48, 0, vcc")
    k.e(f"s_lshl_b32 s{T0}, s{WAVE}, 10\ns_add_u32 s{T0}, s{T0}, s{FLOWN}")
    k.e(f"s_lshl_b32 s{T1}, s{J}, 7\ns_add_u32 s{FLOWN}, s{FLOWN}, s{T1}")
    k.wait_vm(["lnst", "nonce"])
    k.e(f"s_mov_b32 s3, {SPIN_LIMIT}")
    k.e(f"L_nonce:\nv_readfirstlane_b32 s{NONCE}, v54\ns_cmp_lg_u32 s{NONCE}, 0\ns_cbranch_scc1 L_nonce_ok")
    k.e(f"{NLOAD}\ns_waitcnt vmcnt(0)\ns_sub_u32 s3, s3, 1\ns_cmp_lg_u32 s3, 0\ns_cbranch_scc1 L_nonce")
    k.e("L_nonce_ok:\ns_barrier")
    k.e(f"s_add_u32 s{T1}, s{NONCE}, 1\nv_mov_b32 v{VFVAL}, s{T1}")
    k.vmem(FLAG_STORE, "flag")
    stamp('st')
    k.vmem(poll_load(VFP8, T0), ("poll", "xn"))
    k.wait_vm(["bias"])
    for ft in range(8):
        b = facc(ft, 0)
        k.e(f"v_lshlrev_b32 v{b}, 16, v{BI+2*ft}\nv_and_b32 v{b+1}, 0xffff0000, v{BI+2*ft}")
        k.e(f"v_lshlrev_b32 v{b+2}, 16, v{BI+1+2*ft}\nv_and_b32 v{b+3}, 0xffff0000, v{BI+1+2*ft}")
        for tt in range(1, 4 if ft < 6 else 2):
            for r in range(4): k.e(f"v_mov_b32 v{b+4*tt+r}, v{b+r}")
    k.wait_vm([("poll", "xn")])
    for t in poll_check("xn", VFP8, T0, T1, 1): k.e(t)
    stamp('st')
    for kap in range(XD): emit_now(k, x_items(kap))

FINK = opt('--fink', 4)
CHAIN = '--nochain' not in sys.argv
SNAKE = '--nosnake' not in sys.argv
E0 = opt('--e0', 16)
EORD = (3, 0, 1, 2)
EARLY = '--noearly' not in sys.argv
def build_frags():
    frags = []
    def add(st, reads): frags.append(dict(stage=st, reads=reads))
    for st in range(16):
        w = 1 if (st % 4) >= 2 else 0
        for ks, ft in ([(ks, ft) for ft in range(16) for ks in range(2)] if CHAIN else [(ks, ft) for ks in range(2) for ft in range(16)]):
            if ft < 8: reg, off = G1Q + 4*w + ft//2, (st % 2)*32768 + ks*8192 + (ft % 2)*8
            else: reg, off = G1F + 8*w + ft - 8, (st % 2)*32768 + 16384 + ks*8192
            add(st, lambda r, reg=reg, off=off: [f"ds_read_b64_tr_b16 {a(r,2)}, v{reg} offset:{off}", f"ds_read_b64_tr_b16 {a(r+2,2)}, v{reg} offset:{off+1024}"])
    def trw(st, base, t):
        w = 1 if (st % 4) >= 2 else 0; off = (st % 2)*32768 + base
        add(st, lambda r, reg=WV + 8*w + t, off=off: [f"ds_read_b64_tr_b16 {a(r,2)}, v{reg} offset:{off}", f"ds_read_b64_tr_b16 {a(r+2,2)}, v{reg} offset:{off+4096}"])
    for b in range(32):
        st = 16 + b//4; w = 1 if (st % 4) >= 2 else 0
        isk = b == 0 or (b % 2 == 1 and b < 31)
        for n in range(8):
            if isk:
                kt, ks = divmod(n, 4)
                add(st, lambda r, reg=WK + 4*w + ks, off=(st % 2)*32768 + (b % 4)*8192 + kt*4096: [f"ds_read_b128 {a(r,4)}, v{reg} offset:{off}"])
            else: trw(st, (b % 4)*8192, n)
    for m in EORD:
        for ft in range(8): trw(24, m*8192, ft)
    t0 = NACT - TAILK
    order = [(n, ft) for n in range(t0) for ft in range(8)]
    order += [(n, ft) for n in range(t0, NACT - FINK) for ft in range(6)]
    order += [(n, ft) for p in range(3) for n in range(NACT - FINK, NACT) for ft in (2*p, 2*p+1)]
    order += [(n, ft) for n in range(t0, NACT) for ft in (6, 7)]
    for n, ft in order: trw(25 + n//4, (n % 4)*8192, ft)
    return frags, order

def main_body():
    frags, order = build_frags()
    S = Sched(k, frags, AR)
    S.q['g'] = []
    bar_hooks = {}
    def mk_after(st):
        def f():
            if not (EARLY and st > E0): S.q['d'].extend(dma_items(st + 2))
            for h in bar_hooks.get(st, []): h()
        return f
    first_of = {}
    for i, fr in enumerate(frags):
        if fr["first"]:
            first_of[fr["stage"]] = fr
            if fr["stage"] > 0: fr["after_bar"] = mk_after(fr["stage"])
    def mid_barrier(st):
        if EARLY and st + 3 < 39:
            k.e("s_barrier"); S.q['d'].extend(dma_items(st + 3))
    def flag_tasks(phase, sref):
        return [Task(f"s_add_u32 s{sref}, s{NONCE}, {phase}"), Task(f"v_mov_b32 v{VFVAL}, s{sref}"), Task(FLAG_STORE, tag="flag")]
    def poll_tasks(name, voff, soff, sref, phase, then):
        c = poll_check(name, voff, soff, sref, phase)
        def fin():
            k.e(c[2]); then()
        return [Task(fn=lambda: k.wait_vm([("poll", name)])), Task(c[0]), Task(c[1]), Task(fn=fin)]
    k.region = "gemm1"
    G1VQ = {0: 'd', 1: 'x', 3: 'd', 4: 'x', 6: 'p', 7: 'd', 8: 'x', 10: 'd', 11: 'x', 12: 'p', 13: 'd'}
    G1VQ2 = {0: 'd', 1: 'x', 2: 'd', 4: 'x', 5: 'p', 6: 'd', 7: 'x', 9: 'd', 10: 'x', 11: 'd'}
    if CHAIN: S.look = 6
    S.q['d'].extend(dma_items(2))
    S.prime(S.look)
    stamp()
    for kap in range(32):
        S.q['x'].extend(x_items(kap + XD))
        if kap in (0, 1, 2, 4, 6, 8, 12, 16, 20, 24, 28): stamp('g1')
        if TOUCH and kap < 30:
            sr, so = (WO, ST1) if kap < 16 else (W2, ST2)
            S.q['p'].append((None, f"buffer_load_dword v{VDUM}, v{VTCH}, {srd(sr)}, s{so} offen", "pf", f"s_add_u32 s{so}, s{so}, 512"))
        if WL and kap % 2 == 0 and kap//2 + 2 + WL < 16: S.q['p'].append(w_touch())
        if CPF & 2 and kap == 30: S.q['p'].append((None, code_touch(VDUM), "pf", None))
        if CHAIN:
            S.look = 6
            k0 = kap & ~1
            for g_ in range(16):
                ft = (kap & 1)*8 + g_//2; h = g_ & 1
                def mf(ar, ft=ft, h=h):
                    out = []; f0 = S.f & ~1
                    tts = (2*h, 2*h+1) if ft < 14 else (h,)
                    if ft % 2 and SNAKE: tts = tuple(3 - t for t in tts) if ft < 14 else (1 - h,)
                    for tt in tts:
                        acc = a(QACC + (ft*4+tt)*4, 4) if ft < 8 else v(facc(ft-8, tt), 4)
                        for ks in ((0, 1) if tt % 2 == 0 or not SNAKE else (1, 0)):
                            z = k0 == 0 and ft < 8 and len(out) % 2 == 0
                            out.append(f"{MFMA} {acc}, {a(S.areg(f0 + ks),4)}, {xreg(k0 + ks, tt)}, {'0' if z else acc}")
                    return out
                pre = (lambda: k.wait_vm([("x", k0 + 1)])) if ft == 0 and h == 0 else None
                S.group(mf, pre=pre, nextpre=1 if (ft, h) == (15, 1) else 0, vq=(G1VQ if kap % 2 == 0 else G1VQ2).get(g_))
            continue
        for ft in range(16):
            def mf(ar, ft=ft, kap=kap):
                out = []
                for tt in range(4 if ft < 14 else 2):
                    acc = a(QACC + (ft*4+tt)*4, 4) if ft < 8 else v(facc(ft-8, tt), 4)
                    out.append(f"{MFMA} {acc}, {a(ar,4)}, {xreg(kap, tt)}, {'0' if kap == 0 and ft < 8 else acc}")
                return out
            pre = (lambda kap=kap: k.wait_vm([("x", kap)])) if ft == 0 else None
            S.group(mf, pre=pre, nextpre=1 if ft == 15 else 0, vq=G1VQ.get(ft))
    S.flush_side(); S.look = 7
    stamp()
    k.region = "gelu"
    CQ, CG, C1 = 6, 8, 10
    qs = (128 ** -0.5) * math.log2(math.e)
    k.e(f"s_mov_b32 s{CQ}, {f32(qs)}\ns_mov_b32 s{CQ+1}, {f32(qs)}")
    k.wait_vm(["pf"])
    T = VT
    TV = VT + 15
    TW2 = T5
    if TS: k.e(f"v_lshlrev_b32 v{TV}, {TS}, v0\ns_mov_b32 s{TW+1}, s{ST1}\ns_mov_b32 s{TW}, s{ST2}")
    for qt in range(4):
        for ks in range(4):
            for b in range(2):
                src = QACC + ((2*ks+b)*4 + qt)*4
                for r in range(4): k.e(f"v_accvgpr_read_b32 v{T+4*b+r}, a{src+r}")
            for p in range(4): k.e(f"v_pk_mul_f32 {v(T+2*p,2)}, {v(T+2*p,2)}, s[{CQ}:{CQ+1}]")
            for p in range(4): k.e(f"v_cvt_pk_bf16_f32 v{QF+(qt*4+ks)*4+p}, v{T+2*p}, v{T+2*p+1}")
    kk = 2*math.sqrt(2/math.pi)*math.log2(math.e)
    k.e(f"s_mov_b32 s{CG}, {f32(-0.044715*kk)}\ns_mov_b32 s{CG+1}, {f32(-0.044715*kk)}")
    k.e(f"v_mov_b32 v{T+8}, {f32(-kk)}\nv_mov_b32 v{T+9}, {f32(-kk)}")
    k.e(f"s_mov_b32 s{C1}, 1.0\ns_mov_b32 s{C1+1}, 1.0")
    k.e(f"s_mul_i32 s{SX}, s{TOK64}, 458752\ns_add_u32 s{SX}, s{SX}, {H_OFF}")
    k.e(f"s_lshr_b32 s{T1}, s{J}, 1\ns_mul_i32 s{T1}, s{T1}, {7*4096}\ns_add_u32 s{T0}, s{SX}, s{T1}")
    k.e(f"s_and_b32 s{T5}, s{J}, 1\ns_add_u32 s{T2}, s{T0}, {3*4096}")
    k.e(f"s_lshl_b32 s{T1}, s{T5}, 14\ns_add_u32 s{T0}, s{T0}, s{T1}")
    k.e(f"s_mul_i32 s{T1}, s{R}, {28*4096}\ns_add_u32 s{SX}, s{SX}, s{T1}")
    k.e(f"s_lshl_b32 s{SXO}, s{TOK64}, 19\ns_add_u32 s{SXO}, s{SXO}, {O_OFF}\ns_lshl_b32 s{T1}, s{J}, 14\ns_add_u32 s{SOB}, s{SXO}, s{T1}")
    k.e(f"s_lshl_b32 s{T1}, s{R}, 17\ns_add_u32 s{SXO}, s{SXO}, s{T1}")
    def gelu4(x, dst, t):
        for p in range(2): k.e(f"v_pk_mul_f32 {v(t+2*p,2)}, {v(x+2*p,2)}, {v(x+2*p,2)}")
        for p in range(2): k.e(f"v_pk_fma_f32 {v(t+2*p,2)}, {v(t+2*p,2)}, s[{CG}:{CG+1}], {v(T+8,2)}")
        for p in range(2): k.e(f"v_pk_mul_f32 {v(t+2*p,2)}, {v(t+2*p,2)}, {v(x+2*p,2)}")
        for r in range(4): k.e(f"v_exp_f32 v{t+r}, v{t+r}")
        for p in range(2): k.e(f"v_pk_add_f32 {v(t+2*p,2)}, {v(t+2*p,2)}, s[{C1}:{C1+1}]")
        for r in range(4): k.e(f"v_rcp_f32 v{t+r}, v{t+r}")
        for p in range(2): k.e(f"v_pk_mul_f32 {v(t+2*p,2)}, {v(t+2*p,2)}, {v(x+2*p,2)}")
        for p in range(2): k.e(f"v_cvt_pk_bf16_f32 v{dst+p}, v{t+2*p}, v{t+2*p+1}")
    n = 0
    for m in range(4):
        for tt in range(4 if m < 3 else 2):
            d = 240 + (n % 4)*4; n += 1
            gelu4(facc(2*m, tt), d, T); gelu4(facc(2*m+1, tt), d+2, T+4)
            k.vmem(f"buffer_store_dwordx4 {v(d,4)}, {vl(tt)}, {srd(WS)}, s{T0 if m < 3 else T2} offen offset:{to(tt)} sc1", "hst")
        if m < 2: k.e(f"s_add_u32 s{T0}, s{T0}, 4096")
    FLG8, FLG4 = 6, 7
    k.e(f"s_lshl_b32 s{T0}, s{RB}, 12\ns_add_u32 s{T0}, s{T0}, {FL_OFF}\ns_lshl_b32 s{T1}, s{R}, 10\ns_add_u32 s{FLG8}, s{T0}, s{T1}\ns_lshl_b32 s{T1}, s{FB}, 7\ns_add_u32 s{FLG4}, s{T0}, s{T1}")
    OST = 8
    PST, PLD = 66, 16
    k.e(f"s_lshl_b32 s{T0}, s{RB}, 3\ns_add_u32 s{T0}, s{T0}, s{FB}\ns_lshl_b32 s{T0}, s{T0}, 18\ns_add_u32 s{T0}, s{T0}, s{M0W}\ns_add_u32 s{T0}, s{T0}, {PF_OFF}")
    for m in range(4):
        k.e(f"s_add_u32 s{T1}, s{R}, {m+1}\ns_and_b32 s{T1}, s{T1}, 3\ns_lshl_b32 s{T2}, s{T1}, 12\ns_add_u32 s{OST+m}, s{SOB}, s{T2}")
        if m < 3:
            k.e(f"s_lshl_b32 s{T2}, s{T1}, 16\ns_lshl_b32 s{T3}, s{R}, 14\ns_add_u32 s{T2}, s{T2}, s{T3}\ns_add_u32 s{PST+m}, s{T0}, s{T2}")
            k.e(f"s_lshl_b32 s{T2}, s{R}, 16\ns_lshl_b32 s{T3}, s{T1}, 14\ns_add_u32 s{T2}, s{T2}, s{T3}\ns_add_u32 s{PLD+m}, s{T0}, s{T2}")
    k.e(f"s_lshl_b32 s{SWB}, s{R}, 21\ns_sub_u32 s{M0O}, s{WAVE}, s{R}\ns_add_u32 s{M0O}, s{M0O}, 3\ns_and_b32 s{M0O}, s{M0O}, 3\ns_lshl_b32 s{M0O}, s{M0O}, 13")
    COL, OOF = M0W, DBG
    k.e(f"s_lshl_b32 s{COL}, s{FB}, 8\ns_lshl_b32 s{T0}, s{R}, 6\ns_add_u32 s{COL}, s{COL}, s{T0}")
    k.e(f"s_lshl_b32 s{T0}, s{TOK64}, 17\ns_add_u32 s{T0}, s{T0}, s{COL}\ns_lshl_b32 s{T1}, s{T5}, 16\ns_add_u32 s{OOF}, s{T0}, s{T1}")
    for tt in range(1, 4): k.e(f"s_xor_b32 s{OOF+tt}, s{OOF}, {tt*32768}")
    k.region = "attn"
    stamp()
    first_of[18]["also"] = ["hst"]
    bar_hooks[18] = [lambda: S.tasks.extend(flag_tasks(2, T4))]
    for r in range(4): k.e(f"v_mov_b32 v{ONES+r}, 0x3f803f80")
    def sreg(u, qt, kt): return SB + (u % 2)*32 + qt*8 + kt*4
    cnt = [0]
    def aq():
        cnt[0] += 1
        if frags[S.f]["first"] and frags[S.f]["stage"] >= E0: mid_barrier(frags[S.f]["stage"])
        return ['d', 'x'] if cnt[0] % 2 == 0 else None
    def qk_groups(u):
        for kt in range(2):
            for ks in range(4):
                def mf(ar, kt=kt, ks=ks):
                    out = []
                    for qt in range(4):
                        d = v(sreg(u, qt, kt), 4)
                        c = d if ks > 0 else ("0" if u < 2 else v(NEGM + qt*4, 4))
                        out.append(f"{MFMA} {d}, {a(ar,4)}, {v(QF+(qt*4+ks)*4,4)}, {c}")
                    return out
                S.group(mf, vq=aq(), gv=3 if cnt[0] % 2 else 2, rdsplit=False)
    def soft_tasks(u):
        tk = []
        def t(x): tk.append(Task(x, mark=("s", u)))
        if u == 0:
            for qt in range(4):
                b = sreg(0, qt, 0); m = NEGM + qt*4
                t(f"v_max3_f32 v{m}, v{b}, v{b+1}, v{b+2}"); t(f"v_max3_f32 v{m}, v{m}, v{b+3}, v{b+4}")
                t(f"v_max3_f32 v{m}, v{m}, v{b+5}, v{b+6}"); t(f"v_max_f32 v{m}, v{m}, v{b+7}")
            for sw in ("32", "16"):
                for qt in range(4): t(f"v_mov_b32 v{NEGM+qt*4+1}, v{NEGM+qt*4}")
                for qt in range(4): t(f"v_permlane{sw}_swap_b32 v{NEGM+qt*4}, v{NEGM+qt*4+1}")
                for qt in range(4): t(f"v_max_f32 v{NEGM+qt*4}, v{NEGM+qt*4}, v{NEGM+qt*4+1}")
            for qt in range(4):
                for r in range(3, -1, -1): t(f"v_sub_f32 v{NEGM+qt*4+r}, 0, v{NEGM+qt*4}")
        for qt in range(4):
            b = sreg(u, qt, 0)
            for p in range(4):
                for r in (2*p, 2*p+1):
                    if u < 2: t(f"v_add_f32 v{b+r}, v{b+r}, v{NEGM+qt*4}")
                    t(f"v_exp_f32 v{b+r}, v{b+r}")
                t(f"v_cvt_pk_bf16_f32 v{b+p}, v{b+2*p}, v{b+2*p+1}")
        return tk
    def pv_groups(u):
        first = u == 0
        for dt in range(8):
            def mf(ar, dt=dt):
                return [f"{MFMA} {a(QACC + (dt*4+qt)*4, 4)}, {a(ar,4)}, {v(sreg(u, qt, 0),4)}, {'0' if first else a(QACC + (dt*4+qt)*4, 4)}" for qt in range(4)]
            S.group(mf, vq=aq(), gv=3 if cnt[0] % 2 else 2, rdsplit=False)
        S.group(lambda _: [f"{MFMA} {v(LACC+qt*4,4)}, {v(ONES,4)}, {v(sreg(u, qt, 0),4)}, {'0' if first else v(LACC+qt*4,4)}" for qt in range(4)], frag=False)
    HPOLL = opt('--hpoll', 7)
    tch = []; TN = opt('--tn', 1)
    if TS:
        tch += [(None, f"buffer_load_dword v{VCD}, v{TV}, {srd(W2)}, s{TW} offen", "tch", f"s_add_u32 s{TW}, s{TW}, {64 << TS}") for _ in range(-(-7168 // (64 << TS)))]
        tch += [(None, f"buffer_load_dword v{VCD}, v{TV}, {srd(WO)}, s{TW+1} offen", "tch", f"s_add_u32 s{TW+1}, s{TW+1}, {64 << TS}") for _ in range(8192 // (64 << TS))]
    qk_groups(0)
    S.tasks.extend(soft_tasks(0))
    for u in range(16):
        if u in (0, 1, 2, 3, 4, 6, 8, 9, 10, 12, 14): stamp('at')
        if u >= TU:
            S.q['x'].extend(tch[:TN]); del tch[:TN]
        if CPF & 4 and u == 6: S.q['x'].append((None, code_touch(VCD), "cpf", None))
        if u == HPOLL: S.q['x'].append((None, poll_load(VFP8, FLG8), ("poll", "h"), None))
        if u + 1 < 16: qk_groups(u + 1)
        S.flush(("s", u))
        if u == HPOLL + 1:
            S.tasks.extend(poll_tasks("h", VFP8, FLG8, T4, 2, lambda: [S.q['x'].extend(act_items(n)) for n in range(6)]))
        if u + 1 < 16: S.tasks.extend(soft_tasks(u + 1))
        pv_groups(u)
    S.flush()
    stamp()
    k.region = "chk"
    k.e(f"s_mov_b32 s{T5}, 0")
    k.e("L_norm:")
    k.e("s_nop 7")
    k.e(f"v_add_f32 v{VT}, v{LACC}, v{LACC+4}\nv_add_f32 v{VT+1}, v{LACC+8}, v{LACC+12}\nv_add_f32 v{VT}, v{VT}, v{VT+1}")
    k.e(f"s_mov_b32 s{T0}, {f32(2.0**30)}\nv_cmp_nge_f32 vcc, s{T0}, v{VT}")
    k.e(f"s_cmp_lg_u32 s{T5}, 0\ns_cbranch_scc1 L_normok\ns_cbranch_vccnz L_slow\nL_normok:")
    k.region = "s2o"
    RCP, BIAS, SEL, VOUT = VKV, WK, WK, VKV
    for b in range(2): k.vmem(f"buffer_load_dwordx2 {v(BIAS+4+2*b,2)}, v{VQ8}, {srd(B2)}, s{COL} offen offset:{32*b}", "b2")
    for qt in range(4): k.e(f"v_rcp_f32 v{RCP+qt}, v{LACC+qt*4}")
    OS, OP, OW, OA = opt('--os', 60), opt('--op', 9), opt('--ow', 110), opt('--oa', 10)
    OM = opt('--omode', 'sc1').replace('_', ' ').replace('plain', '')
    SKIP = opt('--skip', 8)
    holds = []
    ngrp = [0]
    def choose():
        ngrp[0] += 1
        if not (S.q['x'] or S.q['d'] or S.q['g']): return None
        for h in holds:
            if h[0] <= S.nm < h[1]:
                if h[2] <= 0: return None
                h[2] -= 1
        def dl(it): return it[2][1] if it[2][0] == "act" else ((it[2][1] - 25)*4 - 1 if it[2][0] == "dma" else -99)
        def best(): return min((q for q in 'xdg' if S.q[q]), key=lambda q: dl(S.q[q][0]), default=None)
        urgent = dl(S.q[best()][0]) - cur[0] <= URG
        if ngrp[0] % SKIP == SKIP - 1 and not urgent: return None
        if urgent and len(S.q['x']) + len(S.q['d']) + len(S.q['g']) > 1 and dl(S.q[best()][0]) - cur[0] <= URG - 1:
            for t in S.carry: k.e(t)
            S.carry = []
            q = S.q[best()]; lead.append((cur[0], q[0][2])); emit_now(k, q[:1]); del q[:1]
        lead.append((cur[0], S.q[best()][0][2]))
        return [best()]
    cur = [-4]; lead = []; URG = opt('--urg', 3)
    mid_barrier(24)
    nm0 = S.nm
    holds += [[nm0 + OS, nm0 + OS + 16*OP, 0], [nm0 + OS + 16*OP, nm0 + OS + 16*OP + OW, OA]]
    for e, m in enumerate(EORD):
        for qt in range(4):
            n = e*4 + qt
            t0 = VT + (n % 2)*8; d = OF + n*4; tk = []
            for b in range(2):
                src = QACC + ((2*m+b)*4+qt)*4
                for r in range(4): tk.append(f"v_accvgpr_read_b32 v{t0+4*b+r}, a{src+r}")
            if e == 0:
                pr = (RCP + qt) & ~1; hi = (RCP + qt) & 1
                for p in range(4): tk.append(f"v_pk_mul_f32 {v(t0+2*p,2)}, {v(t0+2*p,2)}, {v(pr,2)} op_sel:[0,{hi}] op_sel_hi:[1,{hi}]")
            else:
                for r in range(8): tk.append(f"v_mul_f32 v{t0+r}, v{t0+r}, v{RCP+qt}")
            for p in range(4): tk.append(f"v_cvt_pk_bf16_f32 v{d+p}, v{t0+2*p}, v{t0+2*p+1}")
            S.tasks.extend(Task(x, mark=("o", e)) for x in tk)
            S.tasks.append(Task(f"buffer_store_dwordx4 {v(d,4)}, {vl(qt)}, {srd(WS)}, s{OST+m} offen offset:{to(qt)} {OM}", tag="ost",
                                mark="olo" if e < 2 else None, after=nm0 + OS + OP*n))
            if e == 0:
                S.flush(("o", 0))
                emit_now(k, S.q['d'][:1]); del S.q['d'][:1]
    S.tasks.extend([Task(f"v_and_b32 v{VT}, 15, v0"), Task(f"v_lshlrev_b32 v{VT}, 11, v{VT}"), Task(f"v_lshl_add_u32 v{VOUT}, v{VQ8}, 1, v{VT}")])
    S.q['x'].extend(act_items(6) + act_items(7))
    for e, m in enumerate(EORD):
        S.flush(("o", e))
        if e == 3:
            k.wait_vm(["b2"])
            S.tasks[:0] = [Task(x, mark="bias") for b in range(2) for p in range(2) for x in
                           (f"v_lshlrev_b32 v{BIAS+4*b+2*p}, 16, v{BIAS+4+2*b+p}", f"v_and_b32 v{BIAS+4*b+2*p+1}, 0xffff0000, v{BIAS+4+2*b+p}")]
        for ft in range(8):
            def mf(ar, e=e, ft=ft):
                return [f"{MFMA} {v(SACC+(ft*4+tt)*4,4)}, {a(ar,4)}, {v(OF+(e*4+tt)*4,4)}, {'0' if e == 0 else v(SACC+(ft*4+tt)*4,4)}" for tt in range(4)]
            S.group(mf, vq=choose(), nextpre=1 if (e, ft) == (3, 7) else 0)
    stamp()
    k.region = "f2"
    OBAR, OPOLL, FBAR, FPOLL, FSUM = opt('--obar', 28), opt('--opoll', 18), opt('--fbar', 34), opt('--fpoll', 39), opt('--fsum', 47)
    FS, FP, FW, FA = opt('--fs', 40), opt('--fp', 9), opt('--fw', 110), opt('--fa', 10); XDL = opt('--xdl', 70.5); SFLAG = opt('--sflag', 4); XUN = opt('--xun', 22)
    first_of[OBAR]["also"] = ["ost"]
    bar_hooks[OBAR] = [lambda: S.tasks.extend(flag_tasks(3, T4))]
    first_of[FBAR]["also"] = ["pst"]
    bar_hooks[FBAR] = [lambda: S.tasks.extend(flag_tasks(4, T4))]
    gate = {"o": False, "f": False}
    pending = []
    def acc_of(n, ft, tt):
        if n >= 28: return v(SACC + (ft*4+tt)*4, 4)
        return a(QACC + (ft*4+tt)*4, 4) if ft < 6 else v(FOWN + ((ft-6)*4+tt)*4, 4)
    def release(g):
        gate[g] = True
        for it in pending: S.q['x'].extend(it)
        del pending[:]
    def pin(i, tt): return v((XRES + 16*i if i < 2 else VT) + 4*tt, 4)
    def xres(b, tt): return XRES + tt*8 + b*4
    def x_unpack():
        tk = []
        for tt in range(4):
            d = XRES + 16 + 4*tt
            for sw in ("16", "32"): tk += [Task(f"v_permlane{sw}_swap_b32 v{d}, v{d+2}"), Task(f"v_permlane{sw}_swap_b32 v{d+1}, v{d+3}")]
            for p in range(4): tk += [Task(f"v_lshlrev_b32 v{XRES+8*tt+2*p}, 16, v{d+p}"), Task(f"v_and_b32 v{XRES+8*tt+2*p+1}, 0xffff0000, v{d+p}")]
        return tk
    def sel_build():
        tk = [Task(x) for x in (f"v_and_b32 v{VT}, 15, v0", f"v_lshrrev_b32 v{VT+1}, 1, v{VQ8}", f"v_sub_u32 v{VT}, v{VT}, v{VT+1}",
               f"v_mov_b32 v{SEL}, 0", f"v_mov_b32 v{SEL+1}, 0", f"v_mov_b32 v{SEL+4}, 0", f"v_mov_b32 v{SEL+5}, 0", f"v_mov_b32 v{VT+1}, 0x3f80", f"v_mov_b32 v{VT+2}, 0x3f800000")]
        for p in range(2):
            tk += [Task(x) for x in (f"v_cmp_eq_u32 vcc, {2*p}, v{VT}", f"v_cndmask_b32 v{SEL+2+p}, 0, v{VT+1}, vcc", f"v_cmp_eq_u32 vcc, {2*p+1}, v{VT}", f"v_cndmask_b32 v{SEL+2+p}, v{SEL+2+p}, v{VT+2}, vcc")]
        S.tasks.extend(tk)
    def f_publish():
        n = 0
        holds.extend([[S.nm + FS, S.nm + FS + 12*FP, 0], [S.nm + FS + 12*FP, S.nm + FS + 12*FP + FW, FA]])
        for m in range(3):
            for tt in range(4):
                t0 = VT + (n % 2)*8; af = S.nm + FS + FP*n; n += 1
                for b in range(2):
                    src = QACC + ((2*m+b)*4+tt)*4
                    for r in range(4): S.tasks.append(Task(f"v_accvgpr_read_b32 v{t0+4*b+r}, a{src+r}", mark="pf"))
                for p in range(4): S.tasks.append(Task(f"v_cvt_pk_bf16_f32 v{t0+p}, v{t0+2*p}, v{t0+2*p+1}"))
                S.tasks.append(Task(f"buffer_store_dwordx4 {v(t0,4)}, v{VL16}, {srd(WS)}, s{PST+m} offen offset:{tt*1024} sc1", tag="pst", after=af))
        for m in range(3): S.tasks.append(Task(f"s_add_u32 s{PST+m}, s{PST+m}, {PS_OFF-PF_OFF}"))
    def f_gather():
        S.q['g'].extend((None, f"buffer_load_dwordx4 {pin(i, tt)}, v{VL16}, {srd(WS)}, s{PLD+i} offen offset:{tt*1024} sc1", ("act", FSUM - 0.5),
                         f"s_add_u32 s{PLD+i}, s{PLD+i}, {PS_OFF-PF_OFF}" if tt == 3 else None) for i in range(3) for tt in range(4))
    def f_finish():
        assert not S.q['g'] and ("act", FSUM - 0.5) in k.vm
        for i in range(3):
            for h in range(2):
                S.group(lambda _, i=i, h=h: [f"{MFMA} {v(FOWN+(b*4+tt)*4,4)}, {v(SEL+2-2*b,4)}, {pin(i, tt)}, {v(FOWN+(b*4+tt)*4,4)}" for tt in (2*h, 2*h+1) for b in range(2)],
                        frag=False, pre=(lambda: k.wait_vm([("act", FSUM - 0.5)])) if i == h == 0 else None, vq=choose())
        S.q['g'].extend((None, f"buffer_load_dwordx4 {v(XRES+16+4*tt,4)}, v{VOUT}, {srd(XS)}, s{OOF+tt} offen", ("act", XDL), None) for tt in range(4))
        tk = []
        for c in range(8):
            g = FOWN + 4*c; t = VT + 4*(c % 4)
            for r in range(4): tk.append(Task(f"v_mul_f32 v{t+r}, {f32(-math.log2(math.e))}, v{g+r}"))
            for r in range(4): tk.append(Task(f"v_exp_f32 v{t+r}, v{t+r}"))
            for r in range(4): tk.append(Task(f"v_add_f32 v{t+r}, 1.0, v{t+r}"))
            for r in range(4): tk.append(Task(f"v_rcp_f32 v{t+r}, v{t+r}"))
            for r in range(4): tk.append(Task(f"v_mul_f32 v{g+r}, v{g+r}, v{t+r}"))
        S.tasks.extend(tk)
    def s_publish(m):
        tk = []
        for tt in range(4):
            d = SACC + ((2*m)*4+tt)*4; e_ = SACC + ((2*m+1)*4+tt)*4
            tk += [Task(f"v_cvt_pk_bf16_f32 v{d}, v{d}, v{d+1}"), Task(f"v_cvt_pk_bf16_f32 v{d+1}, v{d+2}, v{d+3}"),
                   Task(f"v_cvt_pk_bf16_f32 v{d+2}, v{e_}, v{e_+1}"), Task(f"v_cvt_pk_bf16_f32 v{d+3}, v{e_+2}, v{e_+3}"),
                   Task(f"buffer_store_dwordx4 {v(d,4)}, v{VL16}, {srd(WS)}, s{PST+m} offen offset:{tt*1024} sc1", tag="pst", mark="ps")]
        i = max([j + 1 for j, t in enumerate(S.tasks) if t.mark == "ps"], default=0)
        S.tasks[i:i] = tk
    seen = set()
    gp = (NACT - TAILK)*8 + (TAILK - FINK)*6
    for gi, (n, ft) in enumerate(order):
        new = n not in seen
        if gi % 32 == 0: stamp('p3a')
        if gi >= 224 and gi % 16 == 0: stamp('p3b')
        if gi >= 320 and gi % 16 == 0: stamp('p3c')
        if gi < 224 and gi % 16 == 0: stamp('p3d')
        if (n, ft) == (0, 6): S.flush("bias"); S.flush("olo")
        if new:
            seen.add(n)
            cur[0] = n
            if n % 4 == 0: mid_barrier(25 + n//4)
            if n == 28:
                k.region = "s2"; stamp()
                f_publish()
            if CPF & 8 and n == 16: S.q['x'].append((None, code_touch(VCD), "cpf", None))
            if n == XUN: sel_build()
            if n == OPOLL: S.q['x'].insert(0, (None, poll_load(VFP8, FLG8), ("poll", "o"), None))
            if n == OPOLL + 2: S.tasks.extend(poll_tasks("o", VFP8, FLG8, T4, 3, lambda: release("o")))
            if n == FPOLL: S.q['x'].insert(0, (None, poll_load(VFP4, FLG4), ("poll", "pf"), None))
            if n == FPOLL + 1: S.tasks.extend(poll_tasks("pf", VFP4, FLG4, T4, 4, f_gather))
            if n == FSUM: f_finish()
            if n + AD == NACT - 6: S.flush("pf")
            it = act_items(n + AD) if n + AD > 7 else []
            if n + AD >= 28 and not gate["o"]: pending.append(it)
            else: S.q['x'].extend(it)
        if gi > gp and (gi - gp) % (2*FINK) == 0 and gi <= gp + 6*FINK: s_publish((gi - gp)//(2*FINK) - 1)
        if gi == len(order) - SFLAG:
            S.flush("ps")
            S.tasks[:0] = [Task(fn=lambda: k.wait_vm(["pst"])), Task(fn=lambda: k.e("s_barrier"))] + flag_tasks(5, T4) + [Task(poll_load(VFP4, FLG4), tag=("poll", "ps"))]
        def mf(ar, n=n, ft=ft):
            c = lambda tt: acc_of(n, ft, tt) if n else ('0' if ft < 6 else v(BIAS + 4*(ft-6), 4))
            return [f"{MFMA} {acc_of(n, ft, tt)}, {a(ar,4)}, {actreg(n, tt)}, {c(tt)}" for tt in range(4)]
        def pre(n=n):
            assert not any(it[2] == ("act", n) for it in S.q['x']), n
            k.wait_vm([("act", n)])
        nxt = gi + 1 < len(order) and order[gi+1][0] not in seen and order[gi+1][0] != n
        S.group(mf, pre=pre if new else None, nextpre=1 if nxt else 0, vq=choose())
    S.flush(); S.flush_side()
    if '--lead' in sys.argv: print(sorted(dict((str(t), c) for c, t in lead).items(), key=lambda x: x[1]))
    stamp(); stamp('p3c')
    k.region = "final"
    SOWN = SACC + 96
    k.wait_vm([("act", XDL)])
    for t in x_unpack(): k.e(t.txt)
    k.wait_vm([("poll", "ps")])
    for t in poll_check("ps", VFP4, FLG4, T4, 5): k.e(t)
    stamp()
    for i in range(3):
        for tt in range(4): k.vmem(f"buffer_load_dwordx4 {a((i*4+tt)*4,4)}, v{VL16}, {srd(WS)}, s{PLD+i} offen offset:{tt*1024} sc1", ("sin", i))
    for i in range(3):
        k.wait_vm([("sin", i)])
        for tt in range(4):
            for b in range(2):
                d = v(SOWN + (b*4+tt)*4, 4)
                k.e(f"{MFMA} {d}, {v(SEL + 2 - 2*b, 4)}, {a((i*4+tt)*4,4)}, {d}")
    stamp()
    for tt in range(4):
        d = 64 + tt*4
        for b in range(2):
            for p in range(2):
                o = (b*4+tt)*4 + 2*p
                k.e(f"v_pk_fma_f32 {v(SOWN+o,2)}, {v(SOWN+o,2)}, {v(FOWN+o,2)}, {v(xres(b, tt)+2*p,2)}")
        for b in range(2):
            for p in range(2):
                o = SOWN + (b*4+tt)*4 + 2*p
                k.e(f"v_cvt_pk_bf16_f32 v{d+2*b+p}, v{o}, v{o+1}")
        k.e(f"v_permlane32_swap_b32 v{d}, v{d+2}\nv_permlane32_swap_b32 v{d+1}, v{d+3}")
        k.e(f"v_permlane16_swap_b32 v{d}, v{d+2}\nv_permlane16_swap_b32 v{d+1}, v{d+3}")
        k.e(f"buffer_store_dwordx4 {v(d,4)}, v{VOUT}, {srd(OUT)}, s{OOF+tt} offen")
    if STAMPS:
        k.e("s_waitcnt vmcnt(0)"); stamp()
        k.e(f"s_cmp_lg_u32 s{WAVE}, 0\ns_cbranch_scc1 L_end\ns_waitcnt lgkmcnt(0)")
        k.e(f"s_lshl_b32 s{T0}, s2, 6\ns_add_u32 s{T0}, s{T0}, {STAMP_OFF}\nv_mov_b32 v2, 0\ns_mov_b64 exec, 1")
        for n in range(nstamp[0]):
            k.e(f"v_mov_b32 v{4+n}, s{STB+2*n}\nbuffer_store_dword v{4+n}, v2, {srd(WS)}, s{T0} offen offset:{4*n}")
        if '--dbgstamp' in sys.argv:
            sel = [int(x) for x in opt('--dbgstamp', '').split(',')]
            k.e(f"s_load_dwordx2 s[{KC}:{KC+1}], s[0:1], 88\ns_waitcnt lgkmcnt(0)"); mk_srd(KC, 256)
            k.e(f"s_cmp_eq_u32 s2, 0\ns_cselect_b32 s{T0}, 0, 256\ns_cmp_eq_u32 s2, 37\ns_cselect_b32 s{T0}, 32, s{T0}")
            for i, n in enumerate(sel):
                k.e(f"s_sub_u32 s{T1}, s{STB+2*n}, s{STB}\nv_mov_b32 v{20+i}, s{T1}\nbuffer_store_dword v{20+i}, v2, {srd(KC)}, s{T0} offen offset:{4+4*i}")
    k.e("L_end:\ns_endpgm")
    k.region = "slow"
    FR = 160
    k.e(f"L_slow:\ns_mov_b32 s{T5}, 1")
    k.e(f"s_lshl_b32 s{T0}, s{R}, 19\ns_add_u32 s{T0}, s{T0}, {1536*256}")
    k.e(f"v_and_b32 v40, 15, v0\nv_lshlrev_b32 v41, 8, v40\nv_lshl_add_u32 v41, v{VQ8}, 1, v41")
    k.e(f"v_lshlrev_b32 v42, 7, v{VQ8}\nv_lshl_add_u32 v42, v40, 1, v42")
    def loadk():
        k.e(f"s_lshl_b32 s{T2}, s{T1}, 13\ns_add_u32 s{T2}, s{T2}, s{T0}\ns_add_u32 s{T3}, s{T2}, 4096")
        for n in range(8): k.e(f"buffer_load_dwordx4 {v(FR+n*4,4)}, v41, {srd(KC)}, s{T2 + n//4} offen offset:{(n%4)*64}")
        k.e("s_waitcnt vmcnt(0)")
    def qk(cneg):
        for kt in range(2):
            for ks in range(4):
                for qt in range(4):
                    d = v(sreg(0, qt, kt), 4)
                    c = d if ks > 0 else (v(NEGM+qt*4, 4) if cneg else "0")
                    k.e(f"{MFMA} {d}, {v(FR+(kt*4+ks)*4,4)}, {v(QF+(qt*4+ks)*4,4)}, {c}")
    for qt in range(4): k.e(f"v_mov_b32 v{NEGM+qt*4}, 0xff800000")
    k.e(f"s_mov_b32 s{T1}, 0\nL_slow1:")
    loadk(); qk(False)
    for qt in range(4):
        b = sreg(0, qt, 0); m = NEGM + qt*4
        for p in range(4): k.e(f"v_max3_f32 v{m}, v{m}, v{b+2*p}, v{b+2*p+1}")
    k.e(f"s_add_u32 s{T1}, s{T1}, 1\ns_cmp_lt_u32 s{T1}, 16\ns_cbranch_scc1 L_slow1")
    for qt in range(4):
        reduce4(NEGM+qt*4, NEGM+qt*4+1, "v_max_f32")
        for r in range(3, -1, -1): k.e(f"v_sub_f32 v{NEGM+qt*4+r}, 0, v{NEGM+qt*4}")
    for i in range(128): k.e(f"v_accvgpr_write_b32 a{QACC+i}, 0")
    for i in range(16): k.e(f"v_mov_b32 v{LACC+i}, 0")
    k.e(f"s_mov_b32 s{T1}, 0\nL_slow2:")
    loadk(); qk(True)
    for qt in range(4):
        b = sreg(0, qt, 0)
        for r in range(8): k.e(f"v_exp_f32 v{b+r}, v{b+r}")
        for p in range(4): k.e(f"v_cvt_pk_bf16_f32 v{b+p}, v{b+2*p}, v{b+2*p+1}")
    for dt in range(8):
        k.e(f"s_lshl_b32 s3, s{R}, 1\ns_add_u32 s3, s3, {dt+2}\ns_and_b32 s3, s3, 7\ns_lshl_b32 s3, s3, 5\nv_add_u32 v43, s3, v42")
        for e_ in range(8):
            k.e(f"buffer_load_ushort v{44+e_}, v43, {srd(VC)}, s{T2 + e_//4} offen offset:{(e_%4)*256}")
        k.e("s_waitcnt vmcnt(0)")
        for p in range(4): k.e(f"v_lshl_or_b32 v{FR+dt*4+p}, v{45+2*p}, 16, v{44+2*p}")
    for dt in range(8):
        for qt in range(4):
            d = a(QACC + (dt*4+qt)*4, 4)
            k.e(f"{MFMA} {d}, {v(FR+dt*4,4)}, {v(sreg(0, qt, 0),4)}, {d}")
    for qt in range(4): k.e(f"{MFMA} {v(LACC+qt*4,4)}, {v(ONES,4)}, {v(sreg(0, qt, 0),4)}, {v(LACC+qt*4,4)}")
    k.e("s_nop 7")
    k.e(f"s_add_u32 s{T1}, s{T1}, 1\ns_cmp_lt_u32 s{T1}, 16\ns_cbranch_scc1 L_slow2")
    k.e("s_branch L_norm")
    emit_spins()
    k.e("L_code_end:")
    print("over:", S.over, "nops:", k.nopstat)

def main():
    out = sys.argv[1] if len(sys.argv) > 1 and sys.argv[1].endswith(".s") else f"cdna_kernels/{NAME}.s"
    start(); main_body()
    for p in check_hazards(k.L): print("HAZARD", p)
    txt = "; generated by dev/gen4.py\n"
    txt += f"; @launch grid=(256,1,1) block=(256,1,1) lds={LDS_SCR+256}\n"
    txt += '.amdgcn_target "amdgcn-amd-amdhsa--gfx950"\n.text\n' + k.text()
    txt += f""".section .rodata,"a"
.p2align 6
.amdhsa_kernel {NAME}_kernel
  .amdhsa_next_free_vgpr 512
  .amdhsa_next_free_sgpr 102
  .amdhsa_accum_offset 256
  .amdhsa_group_segment_fixed_size 0
  .amdhsa_kernarg_size 104
  .amdhsa_user_sgpr_count 2
  .amdhsa_user_sgpr_kernarg_segment_ptr 1
  .amdhsa_system_sgpr_workgroup_id_x 1
.end_amdhsa_kernel
"""
    open(out, "w").write(txt)
    print("wrote", out, len(txt), "bytes", len(k.L), "lines")
main()
```
